```python
import torch

def _softmax(x, axis=-1):
    return torch.softmax(x, dim=axis)

def _gelu(x):
    return torch.nn.functional.gelu(x, approximate='tanh')

def _silu(x):
    return torch.nn.functional.silu(x)

def _sigmoid(x):
    return torch.sigmoid(x)

def _layernorm(x, axis=-1, eps=1e-05):
    m = x.mean(dim=axis, keepdim=True)
    v = x.var(dim=axis, keepdim=True, unbiased=False)
    return (x - m) / torch.sqrt(v + eps)

def _scatter_add(tgt, idx, src, axis=0):
    return tgt.clone().index_add_(axis, idx, src)

def _segment_sum(src, seg, n):
    out = torch.zeros((n,) + src.shape[1:], dtype=src.dtype)
    return out.index_add_(0, seg, src)

def _pad(x, pw):
    flat = tuple((v for pair in reversed(pw) for v in pair))
    return torch.nn.functional.pad(x, flat)
kernel_name = 'adaLN_cond__grouped_kv_mqa__mixer_s_mlp__prompt'

def setup_inputs():

    _w = lambda a: (lambda t: t.to(torch.bfloat16) if t.is_floating_point() else t)(torch.as_tensor(a))

    def _A_setup():
        B, S, D, H = (1, 2048, 640, 32)
        Dh = D // H
        return {'x': _w((lambda *s: torch.randn(*s, dtype=torch.bfloat16) * 0.05)(B, S, D)), 'wq': _w((lambda *s: torch.randn(*s, dtype=torch.bfloat16) * 0.05)(D, H * Dh)), 'wk': _w((lambda *s: torch.randn(*s, dtype=torch.bfloat16) * 0.05)(D, Dh)), 'wv': _w((lambda *s: torch.randn(*s, dtype=torch.bfloat16) * 0.05)(D, Dh)), 'wo': _w((lambda *s: torch.randn(*s, dtype=torch.bfloat16) * 0.05)(H * Dh, D))}
    _A_in = _A_setup()

    def _B_setup():
        B, S, D, F = (1, 2048, 640, 1728)
        return {'x': _w((lambda *s: torch.randn(*s, dtype=torch.bfloat16) * 0.05)(B, S, D)), 'w1': _w((lambda *s: torch.randn(*s, dtype=torch.bfloat16) * 12.8)(D, D) * D ** (-0.5)), 'w2': _w((lambda *s: torch.randn(*s, dtype=torch.bfloat16) * 12.8)(D, D) * D ** (-0.5)), 'w3': _w((lambda *s: torch.randn(*s, dtype=torch.bfloat16) * 12.8)(D, F) * D ** (-0.5)), 'w4': _w((lambda *s: torch.randn(*s, dtype=torch.bfloat16) * 12.8)(F, D) * F ** (-0.5))}
    _B_in = _B_setup()
    return {'A_x': _A_in['x'], 'A_wq': _A_in['wq'], 'A_wk': _A_in['wk'], 'A_wv': _A_in['wv'], 'A_wo': _A_in['wo'], 'B_x': _B_in['x'], 'B_w1': _B_in['w1'], 'B_w2': _B_in['w2'], 'B_w3': _B_in['w3'], 'B_w4': _B_in['w4'], 'c': _w((lambda *s: torch.randn(*s, dtype=torch.bfloat16) * 0.1)(1, 640) * 8.0), 'w_mod': _w((lambda *s: torch.randn(*s, dtype=torch.bfloat16) * 0.1)(640, 6 * 640) * 640 ** (-0.5) * 8.0)}

def reference(A_x, A_wq, A_wk, A_wv, A_wo, B_x, B_w1, B_w2, B_w3, B_w4, c, w_mod):

    def _A_ref(x, wq, wk, wv, wo):
        B, S, D = x.shape
        H = 32
        Dh = D // H
        q = (lambda x, *d: x.permute(*d))((x @ wq).reshape(B, S, H, Dh), 0, 2, 1, 3)
        k = x @ wk
        v = x @ wv
        scores = torch.einsum('bhqd,bkd->bhqk', q, k) * Dh ** (-0.5)
        p = _softmax(scores, axis=-1)
        o = torch.einsum('bhqk,bkd->bhqd', p, v)
        return (lambda x, *d: x.permute(*d))(o, 0, 2, 1, 3).reshape(B, S, H * Dh) @ wo

    def _B_ref(x, w1, w2, w3, w4):
        B, S, D = x.shape
        h = _gelu(_layernorm(x, axis=-1) @ w1)
        c = D // 4
        g0 = _pad(h[:, :, 0 * c:1 * c], ((0, 0), (1, 0), (0, 0)))[:, :S, :]
        g1 = _pad(h[:, :, 1 * c:2 * c], ((0, 0), (0, 1), (0, 0)))[:, 1:, :]
        g2 = _pad(h[:, :, 2 * c:3 * c], ((0, 0), (2, 0), (0, 0)))[:, :S, :]
        g3 = _pad(h[:, :, 3 * c:], ((0, 0), (0, 2), (0, 0)))[:, 2:, :]
        hs = torch.concatenate([g0, g1, g2, g3], axis=-1) @ w2
        x1 = x + hs
        h2 = _gelu(_layernorm(x1, axis=-1) @ w3) @ w4
        return x1 + h2
    x = A_x
    mod = (_silu(c) @ w_mod).reshape(c.shape[0], 6, 1, -1)
    sa, ca, ga, sb, cb, gb = (mod[:, 0].clone(), mod[:, 1].clone(), mod[:, 2].clone(), mod[:, 3].clone(), mod[:, 4].clone(), mod[:, 5].clone())
    h = _layernorm(x, axis=-1) * (1 + ca) + sa
    x = x + ga * _A_ref(h, A_wq, A_wk, A_wv, A_wo)
    h = _layernorm(x, axis=-1) * (1 + cb) + sb
    x = x + gb * _B_ref(h, B_w1, B_w2, B_w3, B_w4)
    return x
```

```python
import re

def v(a, n=1):
    return f"v{a}" if n == 1 else f"v[{a}:{a+n-1}]"
def s(a, n=1):
    return f"s{a}" if n == 1 else f"s[{a}:{a+n-1}]"

class Asm:
    def __init__(self):
        self.lines = []
        self.uid = 0
    def __call__(self, text):
        for ln in text.split('\n'):
            ln = ln.strip()
            if ln:
                self.lines.append(ln)
    def label(self, name):
        self.lines.append(name + ':')
    def new_label(self, base='L'):
        self.uid += 1
        return f"{base}_{self.uid}"
    def comment(self, t):
        self.lines.append('; ' + t)
    def nop(self, n):
        while n > 0:
            k = min(n, 16)
            self(f"s_nop {k-1}")
            n -= k
    def text(self):
        out = []
        for ln in self.lines:
            if ln.endswith(':') or ln.startswith('.') or ln.startswith(';'):
                out.append(ln)
            else:
                out.append('    ' + ln)
        return '\n'.join(out) + '\n'

TRANS = ('v_exp_f32', 'v_log_f32', 'v_rcp_f32', 'v_rsq_f32', 'v_sqrt_f32', 'v_sin_f32', 'v_cos_f32', 'v_exp_f16', 'v_rcp_iflag_f32')
def _regs(op):
    op = op.strip()
    m = re.fullmatch(r'-?\|?(abs\()?([vsa])\[(\d+):(\d+)\]\)?\|?', op)
    if m:
        return [(m.group(2), i) for i in range(int(m.group(3)), int(m.group(4)) + 1)]
    m = re.fullmatch(r'-?\|?(abs\()?([vsa])(\d+)\)?\|?', op)
    if m:
        return [(m.group(2), int(m.group(3)))]
    if op == 'vcc': return [('s', 'vcc')]
    if op == 'exec': return [('s', 'exec')]
    if op == 'm0': return [('s', 'm0')]
    if op == 'vcc_lo': return [('s', 'vcc')]
    return []

def parse(ln):
    ln = ln.split(';')[0].strip()
    if not ln or ln.endswith(':') or ln.startswith('.'):
        return None
    parts = ln.split(None, 1)
    mn = parts[0]
    ops = []
    if len(parts) > 1:
        cur = ''; depth = 0
        for ch in parts[1]:
            if ch in '[(': depth += 1
            if ch in '])': depth -= 1
            if ch == ',' and depth == 0:
                ops.append(cur.strip()); cur = ''
            else:
                cur += ch
        ops.append(cur.strip())
        last = ops[-1].split()
        if last:
            ops[-1] = last[0]
            mods = last[1:]
        else:
            mods = []
    else:
        mods = []
    return mn, ops, mods

def classify(mn, ops, mods):
    base = mn.replace('_e32', '').replace('_e64', '').replace('_dpp', '').replace('_sdwa', '')
    w = []; r = []
    cls = 'other'
    if base.startswith('v_mfma'):
        cls = 'mfma'
        w = _regs(ops[0]); r = _regs(ops[1]) + _regs(ops[2]) + _regs(ops[3])
        return dict(cls=cls, w=w, r=r, a=_regs(ops[1]), b=_regs(ops[2]), c=_regs(ops[3]), base=base)
    if base.startswith('v_'):
        cls = 'valu'
        if base.startswith('v_cmp'):
            w = _regs(ops[0]); r = sum((_regs(o) for o in ops[1:]), [])
            if base.startswith('v_cmpx'): w += [('s', 'exec')]
        elif base in ('v_readfirstlane_b32', 'v_readlane_b32'):
            w = _regs(ops[0]); r = sum((_regs(o) for o in ops[1:]), [])
        elif base.startswith('v_permlane') and 'swap' in base:
            w = _regs(ops[0]) + _regs(ops[1]); r = list(w)
        elif base in ('v_add_co_u32', 'v_sub_co_u32', 'v_addc_co_u32', 'v_subb_co_u32', 'v_div_scale_f32', 'v_mad_u64_u32'):
            w = _regs(ops[0]) + _regs(ops[1]); r = sum((_regs(o) for o in ops[2:]), [])
        else:
            w = _regs(ops[0]); r = sum((_regs(o) for o in ops[1:]), [])
            if base in ('v_fmac_f32', 'v_dot2c_f32_bf16', 'v_fmaak_f32', 'v_writelane_b32') or 'dpp' in mn or 'sdwa' in mn or base.startswith('v_pk_fmac'):
                r += _regs(ops[0])
            if base == 'v_cndmask_b32' and len(ops) == 3:
                r += [('s', 'vcc')]
        return dict(cls=cls, w=w, r=r, base=base, dpp=('dpp' in mn or any(m.startswith('row_') or m.startswith('quad_perm') for m in mods)), trans=base in TRANS)
    if base.startswith('buffer_') or base.startswith('global_'):
        cls = 'vmem'
        lds = 'lds' in mods or 'lds' in ops
        regs = [_regs(o) for o in ops]
        if base.startswith('buffer_load') and not lds:
            w = regs[0]; r = sum(regs[1:], [])
        elif base.startswith('buffer_load') and lds:
            r = sum(regs, []) + [('s', 'm0')]
        elif base.startswith('global_load'):
            w = regs[0]; r = sum(regs[1:], [])
        else:
            r = sum(regs, [])
            if 'atomic' in base and 'sc0' in mods: w = regs[0]
        return dict(cls=cls, w=w, r=r, base=base, store=('store' in base), wide=('x4' in base or 'x3' in base), data=regs[0] if 'store' in base and base.startswith('buffer') else (regs[1] if 'store' in base else []))
    if base.startswith('ds_'):
        cls = 'ds'
        regs = [_regs(o) for o in ops]
        if base.startswith('ds_read') or base.startswith('ds_bpermute') or base.startswith('ds_swizzle') or base.startswith('ds_permute'):
            w = regs[0]; r = sum(regs[1:], [])
        else:
            r = sum(regs, [])
        return dict(cls=cls, w=w, r=r, base=base)
    if base.startswith('s_'):
        cls = 'salu'
        if base in ('s_nop', 's_waitcnt', 's_barrier', 's_branch', 's_endpgm', 's_sleep', 's_setprio') or base.startswith('s_cbranch') or base.startswith('s_cmp') or base.startswith('s_bitcmp'):
            r = sum((_regs(o) for o in ops), [])
            return dict(cls=cls, w=[], r=r, base=base)
        w = _regs(ops[0]) if ops else []
        r = sum((_regs(o) for o in ops[1:]), [])
        if 'saveexec' in base: w = w + [('s', 'exec')]
        return dict(cls=cls, w=w, r=r, base=base)
    return dict(cls=cls, w=[], r=[], base=base)

def mfma_passes(base):
    if '32x32x16' in base or '32x32x8' in base: return 8
    if '16x16x32' in base or '16x16x16' in base: return 4
    if '32x32x4' in base: return 16
    if '16x16x4bf16' in base or '16x16x4_4b' in base: return 8
    if '4x4x4' in base: return 2
    return 16

def check_hazards(lines, verbose=True):
    ins = []
    for idx, ln in enumerate(lines):
        p = parse(ln)
        if p is None:
            if ln.strip().endswith(':'):
                ins.append((idx, ln, dict(cls='label', w=[], r=[], base='label'), 0))
            continue
        info = classify(*p)
        ws = 1
        if info['base'] == 's_nop':
            ws = int(p[1][0], 0) + 1
        ins.append((idx, ln, info, ws))
    probs = []
    n = len(ins)
    for i in range(n):
        idx, ln, A, _ = ins[i]
        if A['cls'] in ('label', 'other'): continue
        dist = 0
        Aw = set(A['w'])
        for k in range(i + 1, min(n, i + 30)):
            _, ln2, B, ws2 = ins[k]
            if B['cls'] == 'label':
                continue
            need = 0
            Br = set(B['r']); Bw = set(B['w'])
            hitr = Aw & Br; hitw = Aw & Bw
            if A['cls'] == 'valu':
                vw = {x for x in Aw if x[0] in 'va'}
                sw = {x for x in Aw if x[0] == 's'}
                if B['cls'] == 'mfma' and (vw & Br): need = max(need, 2)
                if B['cls'] == 'valu':
                    if A.get('trans') and (vw & Br) and not B.get('trans'): need = max(need, 1)
                    if B.get('dpp') and (vw & Br): need = max(need, 2)
                    if B['base'].startswith('v_permlane') and (vw & Br): need = max(need, 2)
                    if B['base'] in ('v_readfirstlane_b32', 'v_readlane_b32') and (vw & Br): need = max(need, 1)
                    if (sw & Br):
                        if B['base'] in ('v_readlane_b32', 'v_writelane_b32'): need = max(need, 4)
                        else: need = max(need, 2)
                    if ('s', 'exec') in sw and B.get('dpp'): need = max(need, 5)
                if B['cls'] == 'vmem' and (sw & Br): need = max(need, 5)
                if B['cls'] == 'mfma' and ('s', 'exec') in sw: need = max(need, 4)
            if A['cls'] == 'salu':
                if ('s', 'm0') in Aw and B['cls'] == 'vmem' and ('s', 'm0') in Br: need = max(need, 1)
            if A['cls'] == 'mfma':
                P = mfma_passes(A['base'])
                tbl = {2: 5, 4: 8, 8: 12, 16: 20}[P]
                if B['cls'] == 'mfma':
                    c = set(B['c'])
                    if (Aw & set(B['a'])) or (Aw & set(B['b'])): need = max(need, tbl)
                    if Aw & c:
                        if c == Aw and mfma_passes(B['base']) == P: need = max(need, 2 if P == 2 else 0)
                        else: need = max(need, {2: 4, 4: 6, 8: 10, 16: 18}[P])
                elif B['cls'] in ('valu', 'vmem', 'ds'):
                    if (Aw & Br) or (Aw & Bw): need = max(need, tbl)
                if B['cls'] == 'valu' and (set(A['c']) & Bw) and not (Aw & Bw):
                    need = max(need, {2: 1, 4: 3, 8: 7, 16: 15}[P])
            if A['cls'] == 'vmem' and A.get('store') and A.get('wide'):
                d = set(A['data'])
                if B['cls'] == 'valu' and (d & Bw): need = max(need, 2)
                elif (d & Bw): need = max(need, 1)
            if need > dist:
                probs.append((idx, ln, ln2, need, dist))
            dist += ws2
            if dist >= 20: break
    if verbose:
        for p in probs:
            print(f"HAZARD line {p[0]}: '{p[1]}' -> '{p[2]}' need {p[3]} have {p[4]}")
    return probs
```

```python
from asmlib import *
from layout import *

S_WG = 2
SRD_WS = 8
SRD_A = 12
SRD_B = 16
SRD_C = 20
PTR0 = 40
S_X, S_T, S_B, S_J, S_WAVE = 70, 71, 72, 73, 74
def ptr(i): return PTR0 + 2*i

def magic(c): return -(-(1 << 32) // c)

def header(a, name):
    a(f".globl {name}")
    a(".p2align 8")
    a(f".type {name},@function")
    a.label(name)

def descriptor(name, vgpr=256, sgpr=102, acc=None):
    acc = acc or ((vgpr + 3)//4*4)
    return f""".p2align 6
.amdhsa_kernel {name}
  .amdhsa_next_free_vgpr {vgpr}
  .amdhsa_next_free_sgpr {sgpr}
  .amdhsa_accum_offset {acc}
  .amdhsa_group_segment_fixed_size 0
  .amdhsa_kernarg_size 120
  .amdhsa_user_sgpr_count 2
  .amdhsa_user_sgpr_kernarg_segment_ptr 1
  .amdhsa_system_sgpr_workgroup_id_x 1
  .amdhsa_float_denorm_mode_32 3
  .amdhsa_float_denorm_mode_16_64 3
.end_amdhsa_kernel
"""

def load_ptrs(a):
    a(f"s_load_dwordx16 s[40:55], s[0:1], 0")
    a(f"s_load_dwordx8 s[56:63], s[0:1], 64")
    a(f"s_load_dwordx4 s[64:67], s[0:1], 96")
    a(f"s_load_dwordx2 s[68:69], s[0:1], 112")

def srd(a, dst, p, size=None):
    a(f"s_mov_b32 s{dst}, s{ptr(p)}")
    a(f"s_mov_b32 s{dst+1}, s{ptr(p)+1}")
    a(f"s_mov_b32 s{dst+2}, {SZ[p] if size is None else size}")
    a(f"s_mov_b32 s{dst+3}, 0x00020000")

def sdiv(a, dst, src, c):
    a(f"s_mul_hi_u32 s{dst}, s{src}, {magic(c)}")
def sdivmod(a, q, r, src, c):
    a(f"s_mul_hi_u32 s{q}, s{src}, {magic(c)}")
    a(f"s_mul_i32 s{r}, s{q}, {c}")
    a(f"s_sub_u32 s{r}, s{src}, s{r}")

def prologue(a, nwg=256, static_roles=True, end_label='L_end'):
    a(f"s_cmp_ge_u32 s2, {nwg}")
    a(f"s_cbranch_scc1 {end_label}")
    load_ptrs(a)
    a("v_lshrrev_b32 v1, 6, v0")
    a(f"s_and_b32 s{S_X}, s2, 7")
    a(f"v_readfirstlane_b32 s{S_WAVE}, v1")
    a(f"s_lshr_b32 s{S_T}, s2, 3")
    a(f"s_lshr_b32 s{S_B}, s{S_T}, 3")
    a(f"s_and_b32 s{S_J}, s{S_T}, 7")
    a("s_waitcnt lgkmcnt(0)")
    srd(a, SRD_WS, P_WS)

def wave_reduce_add_dpp(a, regs):
    steps = ["row_shr:1 row_mask:0xf bank_mask:0xf", "row_shr:2 row_mask:0xf bank_mask:0xf", "row_shr:4 row_mask:0xf bank_mask:0xf",
             "row_shr:8 row_mask:0xf bank_mask:0xf", "row_bcast:15 row_mask:0xa bank_mask:0xf", "row_bcast:31 row_mask:0xc bank_mask:0xf"]
    for st in steps:
        for r in regs:
            a(f"v_add_f32_dpp v{r}, v{r}, v{r} {st}")
        if len(regs) < 3:
            a.nop(2)

def reduce_g(a, regs, tmp, op='v_add_f32'):
    for r, t in zip(regs, tmp):
        a(f"v_mov_b32 v{t}, v{r}")
    a.nop(2 if len(regs) < 3 else 0)
    for r, t in zip(regs, tmp):
        a(f"v_permlane32_swap_b32 v{r}, v{t}")
    for r, t in zip(regs, tmp):
        a(f"{op} v{r}, v{r}, v{t}")
    for r, t in zip(regs, tmp):
        a(f"v_mov_b32 v{t}, v{r}")
    a.nop(2 if len(regs) < 3 else 0)
    for r, t in zip(regs, tmp):
        a(f"v_permlane16_swap_b32 v{r}, v{t}")
    for r, t in zip(regs, tmp):
        a(f"{op} v{r}, v{r}, v{t}")

STAMP = False
def stamp(a, idx, sreg=98, off=False):
    if not STAMP: return
    import os
    a(f"s_memrealtime s[{sreg}:{sreg+1}]" if os.environ.get('STAMPRT') else f"s_memtime s[{sreg}:{sreg+1}]")
    a("s_waitcnt lgkmcnt(0)")
    a(f"v_writelane_b32 v255, s{sreg}, {idx + (STAMP_OFF if off else 0)}")
def stamp_dump(a, n=32):
    if not STAMP: return
    a(f"""
    s_lshl_b32 s24, s2, 3
    s_add_u32 s24, s24, s{S_WAVE}
    s_lshl_b32 s24, s24, 7
    s_add_u32 s24, s24, {WS_DBG1 + 0x20000}
    v_mov_b32 v254, v1
    v_lshlrev_b32 v253, 2, v254
    s_mov_b64 exec, 0xffffffff
    buffer_store_dword v255, v253, s[{SRD_WS}:{SRD_WS+3}], s24 offen
    s_mov_b64 exec, -1
    """)
STAMP_OFF = 0
```

```python
from common import *
import common
from k_qkv import lane_ids, f32bits

QAM, QBM, QAT, QBT = 8, 12, 16, 18
KAM, KAT, KBT, KBM = 20, 24, 26, 28
VA0, VA1, VB0, VB1 = 32, 36, 40, 44
SA, SB, PA, PB, OA, OB = 48, 64, 80, 88, 96, 112
V_AK, V_AT = 4, 5
V_DMA = 6
CH = 4 * KVT
S_CH, S_DELTA, S_DG, S_DL = 80, 81, 82, 83

def mf32(d, a_, b_, c): return f"v_mfma_f32_32x32x16_bf16 v[{d}:{d+15}], v[{a_}:{a_+3}], v[{b_}:{b_+3}], " + (f"v[{c}:{c+15}]" if c is not None else "0")
def mf8(d, a_, b_): return f"v_mfma_f32_32x32x8bf16_1k v[{d}:{d+15}], v[{a_}:{a_+1}], v[{b_}:{b_+1}], v[{d}:{d+15}]"

def kv_dma(a, buf, KVB, which=(0, 1)):
    for k in which:
        a(f"s_add_u32 m0, s{84+k}, {KVB + buf*CH}")
        a(f"s_nop 0")
        a(f"buffer_load_dwordx4 v{V_DMA}, s[{SRD_WS}:{SRD_WS+3}], s{82+k} offen lds")
        a(f"s_add_u32 s{82+k}, s{82+k}, {CH}")

def kv_dma5(a, buf, KVB):
    for i in range(5):
        if i < 4:
            a(f"s_add_u32 m0, s84, {KVB + buf*CH + 3072*i}")
            a(f"s_add_u32 s83, s82, {3072*i}")
        else:
            a(f"s_add_u32 m0, s85, {KVB + buf*CH}")
            a(f"s_sub_u32 s83, s82, s84"); a(f"s_add_u32 s83, s83, s85")
        a(f"buffer_load_dwordx4 v{V_DMA}, s[{SRD_WS}:{SRD_WS+3}], s83 offen lds")
    a(f"s_add_u32 s82, s82, {CH}")

def half_step(a, S, P, mfmas, lds_reads, pos, prio=None):
    E = lambda r: f"v_exp_f32 v{S+r}, v{S+r}"
    C = lambda k: f"v_cvt_pk_bf16_f32 v{P+k}, v{S+2*k}, v{S+2*k+1}"
    order = 'EEEEECEECEECEECEECEECECC'
    valu = []; e = c = 0
    for ch in order:
        if ch == 'E': valu.append(E(e)); e += 1
        else: valu.append(C(c)); c += 1
    if prio is not None and PRIO: a(f"s_setprio {prio}")
    for ln in lds_reads:
        if not NOLDS: a(ln)
    for idx, ins in enumerate(valu):
        a(ins)
        if idx in pos:
            m = mfmas[pos[idx]]
            if isinstance(m, tuple):
                a(m[0]); a(m[1])
            else:
                a(m)
import os
PRIO = os.environ.get('PRIO', '1') == '1'
NOBAR = bool(os.environ.get('NOBAR')); NODMA = bool(os.environ.get('NODMA')); NOLDS = bool(os.environ.get('NOLDS'))
P1 = {0: 0, 4: 1, 9: 2, 14: 3}
P2 = {1: 0, 5: 1, 9: 2, 12: 3}

def gen_attn_core(a, KVB, nchunk=16, hook=None, first_vm=2):
    T = KVT
    if first_vm is not None: a(f"s_waitcnt vmcnt({first_vm})")
    a("s_barrier")
    a(f"ds_read_b128 v[{KAM}:{KAM+3}], v{V_AK}")
    a(f"ds_read_b64 v[{KAT}:{KAT+1}], v{V_AT}")
    for r in range(16):
        a(f"v_mov_b32 v{OA+r}, 0"); a(f"v_mov_b32 v{OB+r}, 0")
    for r in range(8):
        a(f"v_mov_b32 v{PB+r}, 0"); a(f"v_mov_b32 v{VB0+r}, 0")
    a("s_waitcnt lgkmcnt(0)")
    a(mf32(SA, KAM, QAM, None)); a(mf8(SA, KAT, QAT))
    a(f"s_mov_b32 s{S_CH}, 0")
    if hook is None: a("s_mov_b32 s81, 0")
    a.nop(12)
    a(".p2align 6")
    a.label("L_at_loop")
    def dma_ins(buf, k):
        return [f"s_add_u32 m0, s{84+k}, {KVB + buf*CH}",
                f"buffer_load_dwordx4 v{V_DMA}, s[{SRD_WS}:{SRD_WS+3}], s{82+k} offen lds",
                f"s_add_u32 s{82+k}, s{82+k}, {CH}"]
    for buf in range(2):
        B = buf * CH
        NB = (1 - buf) * CH
        half_step(a, SA, PA,
                  [mf32(SB, KAM, QBM, None), mf8(SB, KAT, QBT), mf32(OB, VB0, PB, OB), mf32(OB, VB1, PB+4, OB)],
                  [f"ds_read_b128 v[{VA0}:{VA0+3}], v{V_AK} offset:{B+KV_V0}",
                   f"ds_read_b128 v[{VA1}:{VA1+3}], v{V_AK} offset:{B+KV_V1}",
                   f"ds_read_b128 v[{KBM}:{KBM+3}], v{V_AK} offset:{B+T}",
                   f"ds_read_b64 v[{KBT}:{KBT+1}], v{V_AT} offset:{B+T}"], P1, 2)
        half_step(a, SB, PB,
                  [("s_waitcnt lgkmcnt(0)", mf32(OA, VA0, PA, OA)), mf32(OA, VA1, PA+4, OA), mf32(SA, KBM, QAM, None), mf8(SA, KBT, QAT)],
                  [], P2, 1)
        half_step(a, SA, PA,
                  [mf32(SB, KBM, QBM, None), mf8(SB, KBT, QBT), mf32(OB, VA0, PB, OB), mf32(OB, VA1, PB+4, OB)],
                  [f"ds_read_b128 v[{VB0}:{VB0+3}], v{V_AK} offset:{B+T+KV_V0}",
                   f"ds_read_b128 v[{VB1}:{VB1+3}], v{V_AK} offset:{B+T+KV_V1}"], P1, 0)
        if hook is not None:
            lw = a.new_label('L_bw')
            a("s_cmp_lt_u32 s74, 5"); a(f"s_cbranch_scc1 {lw}")
            a("s_waitcnt vmcnt(0)")
            a.label(lw)
            a("s_waitcnt lgkmcnt(0)")
        else:
            a("s_waitcnt vmcnt(0) lgkmcnt(0)")
        if not NOBAR: a("s_barrier")
        if PRIO: a("s_setprio 3")
        if hook is None:
            a(f"s_add_u32 m0, s84, {KVB + buf*CH}")
            a(f"ds_read_b128 v[{KAM}:{KAM+3}], v{V_AK} offset:{NB}")
            a(f"ds_read_b64 v[{KAT}:{KAT+1}], v{V_AT} offset:{NB}")
            if not NODMA: a(f"buffer_load_dwordx4 v{V_DMA}, s[{SRD_WS}:{SRD_WS+3}], s82 offen lds")
            a(f"s_add_u32 m0, s85, {KVB + buf*CH}")
            a(f"s_add_u32 s82, s82, {CH}")
            if not NODMA: a(f"buffer_load_dwordx4 v{V_DMA}, s[{SRD_WS}:{SRD_WS+3}], s83 offen lds")
            a(f"s_add_u32 s83, s83, {CH}")
        else:
            a(f"ds_read_b128 v[{KAM}:{KAM+3}], v{V_AK} offset:{NB}")
            a(f"ds_read_b64 v[{KAT}:{KAT+1}], v{V_AT} offset:{NB}")
            ld = a.new_label('L_kd')
            a("s_cmp_lt_u32 s74, 5"); a(f"s_cbranch_scc1 {ld}")
            kv_dma5(a, buf, KVB)
            a.label(ld)
        if hook is not None: hook(a, buf)
        half_step(a, SB, PB,
                  [mf32(OA, VB0, PA, OA), mf32(OA, VB1, PA+4, OA), ("s_waitcnt lgkmcnt(0)", mf32(SA, KAM, QAM, None)), mf8(SA, KAT, QAT)],
                  [], P2, None)
    a(f"s_add_u32 s{S_CH}, s{S_CH}, 2")
    a(f"s_cmp_lt_u32 s{S_CH}, {nchunk}")
    a("s_cbranch_scc1 L_at_loop")
    if PRIO: a("s_setprio 0")
    a("s_nop 1")
    a(mf32(OB, VB0, PB, OB)); a(mf32(OB, VB1, PB+4, OB))
    a("s_waitcnt vmcnt(0)")

def gen_attn(a, name='attn_kernel'):
    header(a, name)
    END = 'L_at_end'
    KVB = 114688
    stamp(a, 0)
    prologue(a, end_label=END)
    lane_ids(a)
    W_, KH, ROW0, M_ = 75, 76, 77, 78
    a(f"""
    s_and_b32 s{W_}, s{S_WAVE}, 3
    s_lshr_b32 s{KH}, s{S_WAVE}, 2
    s_lshl_b32 s{ROW0}, s{S_X}, 8
    s_lshl_b32 s24, s{S_B}, 6
    s_add_u32 s{ROW0}, s{ROW0}, s24
    s_lshr_b32 s{M_}, s{ROW0}, 4
    s_add_u32 s{M_}, s{M_}, s{W_}
    v_lshlrev_b32 v{V_DMA}, 4, v1
    v_lshlrev_b32 v7, 3, v1
    s_lshl_b32 s27, s{M_}, 3
    s_add_u32 s27, s27, s{S_J}
    s_mul_i32 s27, s27, 3072
    s_add_u32 s27, s27, {WS_Q}
    buffer_load_dwordx4 v[{QAM}:{QAM+3}], v{V_DMA}, s[{SRD_WS}:{SRD_WS+3}], s27 offen
    buffer_load_dwordx4 v[{QBM}:{QBM+3}], v{V_DMA}, s[{SRD_WS}:{SRD_WS+3}], s27 offen offset:1024
    buffer_load_dwordx2 v[{QAT}:{QAT+1}], v7, s[{SRD_WS}:{SRD_WS+3}], s27 offen offset:2048
    buffer_load_dwordx2 v[{QBT}:{QBT+1}], v7, s[{SRD_WS}:{SRD_WS+3}], s27 offen offset:2560
    v_lshlrev_b32 v20, 2, v1
    s_mov_b32 s27, {WS_KN}
    buffer_load_dword v21, v20, s[{SRD_WS}:{SRD_WS+3}], s27 offen
    buffer_load_dword v22, v20, s[{SRD_WS}:{SRD_WS+3}], s27 offen offset:256
    buffer_load_dword v23, v20, s[{SRD_WS}:{SRD_WS+3}], s27 offen offset:512
    buffer_load_dword v24, v20, s[{SRD_WS}:{SRD_WS+3}], s27 offen offset:768
    """)
    a(f"""
    s_mul_i32 s24, s{KH}, {2*KVT}
    s_add_u32 s24, s24, {KVB}
    v_add_u32 v{V_AK}, s24, v{V_DMA}
    s_add_u32 s24, s24, {KV_KT}
    v_add_u32 v{V_AT}, s24, v7
    s_lshl_b32 s84, s{S_WAVE}, 10
    s_add_u32 s85, s84, 8192
    s_min_u32 s85, s85, {13*1024}
    """)
    a("s_waitcnt vmcnt(0)")
    a("v_max_f32 v21, v21, v22"); a("v_max_f32 v23, v23, v24")
    a("v_mov_b32 v25, 0"); a("v_mov_b32 v26, 0"); a("v_mov_b32 v27, 0")
    for r in range(4):
        a(f"v_dot2c_f32_bf16 v25, v{QAM+r}, v{QAM+r}")
        a(f"v_dot2c_f32_bf16 v26, v{QBM+r}, v{QBM+r}")
    for r in range(4):
        a(f"v_dot2c_f32_bf16 v27, v{QAT+r}, v{QAT+r}")
    a("s_nop 2")
    a("v_max3_f32 v25, v25, v26, v27")
    steps = ["row_shr:1 row_mask:0xf bank_mask:0xf", "row_shr:2 row_mask:0xf bank_mask:0xf", "row_shr:4 row_mask:0xf bank_mask:0xf",
             "row_shr:8 row_mask:0xf bank_mask:0xf", "row_bcast:15 row_mask:0xa bank_mask:0xf", "row_bcast:31 row_mask:0xc bank_mask:0xf"]
    for st in steps:
        for r in (21, 23, 25):
            a(f"v_max_f32_dpp v{r}, v{r}, v{r} {st}")
    a("v_add_f32 v21, v21, v23")
    a(f"v_mul_f32 v21, v21, v25")
    a(f"v_mul_f32 v21, 0x40400000, v21")
    a("s_nop 0")
    a("v_readlane_b32 s28, v21, 63")
    a("s_nop 1")
    a(f"""
    v_mov_b32 v22, s28
    v_mov_b32 v23, {hex(f32bits(9000.0))}
    v_cmp_nle_f32 vcc, v22, v23
    s_cmp_lg_u64 vcc, 0
    s_cselect_b32 s28, 1, 0
    v_mov_b32 v22, s28
    s_lshl_b32 s29, s{S_WAVE}, 2
    v_mov_b32 v23, s29
    ds_write_b32 v23, v22 offset:{143360}
    s_waitcnt lgkmcnt(0)
    s_barrier
    v_and_b32 v23, 7, v1
    v_lshlrev_b32 v23, 2, v23
    ds_read_b32 v22, v23 offset:{143360}
    s_waitcnt lgkmcnt(0)
    v_cmp_ne_u32 vcc, 0, v22
    s_cmp_lg_u64 vcc, 0
    s_cbranch_scc0 L_at_fast
    """.replace('offset:143360', 'offset:0'))
    gen_maxpass(a, KVB, KH)
    a.label("L_at_fast")
    stamp(a, 1)
    a(f"s_add_u32 s82, s84, {WS_KV}")
    a(f"s_add_u32 s83, s85, {WS_KV}")
    kv_dma(a, 0, KVB)
    kv_dma(a, 1, KVB)
    gen_attn_core(a, KVB)
    gen_attn_epilogue(a, KVB, KH, M_, W_)
    stamp(a, 4)
    a("s_waitcnt vmcnt(0)")
    stamp(a, 5)
    stamp_dump(a)
    a.label(END)
    a("s_endpgm")

def gen_maxpass(a, KVB, KH, fused=False):
    MA, MB = 96, 97
    a(f"v_mov_b32 v{MA}, 0xff7fffff"); a(f"v_mov_b32 v{MB}, 0xff7fffff")
    a(f"s_add_u32 s82, s84, {WS_KV}")
    if not fused: a(f"s_add_u32 s83, s85, {WS_KV}")
    a(f"s_mov_b32 s{S_CH}, 0")
    a.label("L_mx_loop")
    a("s_barrier")
    if fused:
        a("s_cmp_lt_u32 s74, 5"); a("s_cbranch_scc1 L_mx_nd")
        kv_dma5(a, 0, KVB)
        a.label("L_mx_nd")
    else:
        kv_dma(a, 0, KVB)
    a("s_waitcnt vmcnt(0)")
    a("s_barrier")
    for t in range(2):
        a(f"ds_read_b128 v[{KAM}:{KAM+3}], v{V_AK} offset:{t*KVT}")
        a(f"ds_read_b64 v[{KAT}:{KAT+1}], v{V_AT} offset:{t*KVT}")
        a("s_waitcnt lgkmcnt(0)")
        a(mf32(SA, KAM, QAM, None)); a(mf8(SA, KAT, QAT))
        a(mf32(SB, KAM, QBM, None)); a(mf8(SB, KAT, QBT))
        a.nop(16)
        for r in range(0, 16, 2):
            a(f"v_max3_f32 v{MA}, v{SA+r}, v{SA+r+1}, v{MA}")
            a(f"v_max3_f32 v{MB}, v{SB+r}, v{SB+r+1}, v{MB}")
    a(f"s_add_u32 s{S_CH}, s{S_CH}, 1")
    a(f"s_cmp_lt_u32 s{S_CH}, 16")
    a("s_cbranch_scc1 L_mx_loop")
    a(f"v_mov_b32 v98, v{MA}"); a(f"v_mov_b32 v99, v{MB}"); a("s_nop 1")
    a(f"v_permlane32_swap_b32 v{MA}, v98"); a(f"v_permlane32_swap_b32 v{MB}, v99")
    a(f"v_max_f32 v{MA}, v{MA}, v98"); a(f"v_max_f32 v{MB}, v{MB}, v99")
    a("s_barrier")
    a(f"""
    s_lshl_b32 s24, s{S_WAVE}, 9
    s_add_u32 s24, s24, {KVB}
    v_lshl_add_u32 v98, v1, 3, s24
    s_xor_b32 s25, s{S_WAVE}, 4
    s_lshl_b32 s25, s25, 9
    s_add_u32 s25, s25, {KVB}
    v_lshl_add_u32 v99, v1, 3, s25
    ds_write_b64 v98, v[{MA}:{MB}]
    s_waitcnt lgkmcnt(0)
    s_barrier
    ds_read_b64 v[100:101], v99
    s_waitcnt lgkmcnt(0)
    v_max_f32 v{MA}, v{MA}, v100
    v_max_f32 v{MB}, v{MB}, v101
    s_barrier
    """)
    for M, QT in ((MA, QAT), (MB, QBT)):
        a(f"""
        v_sub_f32 v100, 0, v{M}
        v_and_b32 v101, 0xffff0000, v100
        v_sub_f32 v100, v100, v101
        v_and_b32 v102, 0xffff0000, v100
        v_sub_f32 v100, v100, v102
        v_lshrrev_b32 v101, 16, v101
        v_or_b32 v101, v101, v102
        v_lshrrev_b32 v100, 16, v100
        s_mov_b32 exec_lo, 0
        v_mov_b32 v{QT}, v101
        v_mov_b32 v{QT+1}, v100
        s_mov_b32 exec_lo, -1
        """)

def gen_attn_epilogue(a, KVB, KH, M_, W_, st=''):
    a("s_barrier")
    a(f"""
    s_mul_i32 s24, s{W_}, 6144
    s_add_u32 s24, s24, {KVB}
    v_lshl_add_u32 v7, v1, 4, s24
    s_cmp_eq_u32 s{KH}, 0
    s_cbranch_scc1 L_ae_rd
    s_nop 7
    """)
    for q in range(3):
        a(f"ds_write_b128 v7, v[{OA+4*q}:{OA+4*q+3}] offset:{1024*q}")
        a(f"ds_write_b128 v7, v[{OB+4*q}:{OB+4*q+3}] offset:{1024*(3+q)}")
    a("s_waitcnt lgkmcnt(0)")
    a.label("L_ae_rd")
    a("s_barrier")
    a(f"s_cmp_eq_u32 s{KH}, 0")
    a("s_cbranch_scc0 L_ae_done")
    for q in range(6):
        a(f"ds_read_b128 v[{SA+4*q}:{SA+4*q+3}], v7 offset:{1024*q}")
    a("s_waitcnt lgkmcnt(0)")
    for r in range(12):
        a(f"v_add_f32 v{OA+r}, v{OA+r}, v{SA+r}")
        a(f"v_add_f32 v{OB+r}, v{OB+r}, v{SA+12+r}")
    a(f"v_mov_b32 v20, v{OA+8}"); a(f"v_mov_b32 v21, v{OA+8}"); a(f"v_mov_b32 v22, v{OB+8}"); a(f"v_mov_b32 v23, v{OB+8}")
    a("s_nop 1")
    a("v_permlane32_swap_b32 v20, v21"); a("v_permlane32_swap_b32 v22, v23")
    a("v_rcp_f32 v21, v21"); a("v_rcp_f32 v23, v23"); a("s_nop 0")
    for r in range(12):
        a(f"v_mul_f32 v{OA+r}, v{OA+r}, v21")
        a(f"v_mul_f32 v{OB+r}, v{OB+r}, v23")
    for k in range(4):
        a(f"v_cvt_pk_bf16_f32 v{24+k}, v{OA+2*k}, v{OA+2*k+1}")
        a(f"v_cvt_pk_bf16_f32 v{28+k}, v{OB+2*k}, v{OB+2*k+1}")
    a(f"v_cvt_pk_bf16_f32 v32, v{OA+8}, v{OA+9}"); a(f"v_cvt_pk_bf16_f32 v33, v{OA+10}, v{OA+11}")
    a(f"v_cvt_pk_bf16_f32 v34, v{OB+8}, v{OB+9}"); a(f"v_cvt_pk_bf16_f32 v35, v{OB+10}, v{OB+11}")
    a(f"""
    v_lshrrev_b32 v36, 5, v1
    v_bfe_u32 v37, v1, 4, 1
    v_lshl_add_u32 v38, v37, 1, v36
    v_mul_u32_u24 v38, {PLANE}, v38
    v_lshl_add_u32 v38, v2, 4, v38
    v_mul_u32_u24 v39, {PLANE}, v37
    v_lshl_add_u32 v39, v2, 4, v39
    v_mov_b32 v40, 0x7fffffff
    v_cmp_eq_u32 vcc, 0, v36
    s_mul_i32 s24, s{S_J}, {10*PLANE}
    s_lshl_b32 s25, s{M_}, 8
    s_add_u32 s24, s24, s25
    v_cndmask_b32 v39, v40, v39, vcc
    s_add_u32 s24, s24, {WS_O + GUARD*16}
    s_add_u32 s25, s24, {4*PLANE}
    s_add_u32 s26, s24, {8*PLANE}
    buffer_store_dwordx4 v[24:27], v38, s[{SRD_WS}:{SRD_WS+3}], s24 offen {st}
    buffer_store_dwordx4 v[28:31], v38, s[{SRD_WS}:{SRD_WS+3}], s25 offen {st}
    buffer_store_dwordx4 v[32:35], v39, s[{SRD_WS}:{SRD_WS+3}], s26 offen {st}
    """)
    a.label("L_ae_done")


def gen_attn_core3(a, KVB, hook, nchunk=16):
    T = KVT
    a("s_barrier")
    a(f"ds_read_b128 v[{KAM}:{KAM+3}], v{V_AK}")
    a(f"ds_read_b64 v[{KAT}:{KAT+1}], v{V_AT}")
    for r in range(0, 16, 2):
        a(f"v_mov_b64 v[{OA+r}:{OA+r+1}], 0"); a(f"v_mov_b64 v[{OB+r}:{OB+r+1}], 0")
    for r in range(0, 8, 2):
        a(f"v_mov_b64 v[{PB+r}:{PB+r+1}], 0"); a(f"v_mov_b64 v[{VB0+r}:{VB0+r+1}], 0")
    a("s_waitcnt lgkmcnt(0)")
    a(mf32(SA, KAM, QAM, None)); a(mf8(SA, KAT, QAT))
    a(f"s_mov_b32 s{S_CH}, 0")
    a.nop(12)
    a(".p2align 6")
    a.label("L_at_loop")
    for buf in range(3):
        B = buf * CH
        NB = ((buf + 1) % 3) * CH
        half_step(a, SA, PA,
                  [mf32(SB, KAM, QBM, None), mf8(SB, KAT, QBT), mf32(OB, VB0, PB, OB), mf32(OB, VB1, PB+4, OB)],
                  [f"ds_read_b128 v[{VA0}:{VA0+3}], v{V_AK} offset:{B+KV_V0}",
                   f"ds_read_b128 v[{VA1}:{VA1+3}], v{V_AK} offset:{B+KV_V1}",
                   f"ds_read_b128 v[{KBM}:{KBM+3}], v{V_AK} offset:{B+T}",
                   f"ds_read_b64 v[{KBT}:{KBT+1}], v{V_AT} offset:{B+T}"], P1, 2)
        half_step(a, SB, PB,
                  [("s_waitcnt lgkmcnt(0)", mf32(OA, VA0, PA, OA)), mf32(OA, VA1, PA+4, OA), mf32(SA, KBM, QAM, None), mf8(SA, KBT, QAT)],
                  [], P2, 1)
        half_step(a, SA, PA,
                  [mf32(SB, KBM, QBM, None), mf8(SB, KBT, QBT), mf32(OB, VA0, PB, OB), mf32(OB, VA1, PB+4, OB)],
                  [f"ds_read_b128 v[{VB0}:{VB0+3}], v{V_AK} offset:{B+T+KV_V0}",
                   f"ds_read_b128 v[{VB1}:{VB1+3}], v{V_AK} offset:{B+T+KV_V1}"], P1, 0)
        lw = a.new_label('L_bw')
        a("s_cmp_lt_u32 s74, 5"); a(f"s_cbranch_scc1 {lw}")
        a("s_waitcnt vmcnt(5)")
        a.label(lw)
        a("s_waitcnt lgkmcnt(0)")
        a("s_barrier")
        if PRIO: a("s_setprio 3")
        a(f"ds_read_b128 v[{KAM}:{KAM+3}], v{V_AK} offset:{NB}")
        a(f"ds_read_b64 v[{KAT}:{KAT+1}], v{V_AT} offset:{NB}")
        ld = a.new_label('L_kd')
        a("s_cmp_lt_u32 s74, 5"); a(f"s_cbranch_scc1 {ld}")
        kv_dma5(a, buf, KVB)
        a.label(ld)
        hook(a, buf)
        half_step(a, SB, PB,
                  [mf32(OA, VB0, PA, OA), mf32(OA, VB1, PA+4, OA), ("s_waitcnt lgkmcnt(0)", mf32(SA, KAM, QAM, None)), mf8(SA, KAT, QAT)],
                  [], P2, None)
        a(f"s_add_u32 s{S_CH}, s{S_CH}, 1")
        if buf < 2:
            a(f"s_cmp_eq_u32 s{S_CH}, {nchunk}"); a("s_cbranch_scc1 L_at_done")
        else:
            a(f"s_cmp_lt_u32 s{S_CH}, {nchunk}"); a("s_cbranch_scc1 L_at_loop")
    a.label("L_at_done")
    if PRIO: a("s_setprio 0")
    a("s_nop 1")
    a(mf32(OB, VB0, PB, OB)); a(mf32(OB, VB1, PB+4, OB))
    a("s_waitcnt vmcnt(0)")
```

```python
from common import *
import common
from k_qkv import lane_ids, f32bits

V_ACTOFF, V_WADDR = 4, 5
X1, Y1, ACC = 8, 28, 48
WB = (104, 132)
ACT = 160
T0 = 240
SLOT = 28672
L_MISC = 145408
L_MV = L_MISC
L_CV = L_MISC + 1280
L_S3 = L_MISC + 2240
W_, ROW0, M_, FLAGV, LOCAL = 75, 77, 78, 79, 80
SRD_ACT = SRD_A
S_LO, S_DA, S_DB, S_DC, S_NCH, S_CCH, S_SLOT, S_PH = 81, 82, 83, 84, 85, 86, 87, 88
S_SPIN = 101
FL_O, FL_Z, FL_S1, FL_G, FL_Y, FL_S2, FL_U = range(7)
import os
LOCALV = int(os.environ.get('LOCALV', '0'))
NOACT = bool(os.environ.get('NOACT')); NOWDMA = bool(os.environ.get('NOWDMA')); ACTSC = os.environ.get('ACTSC', 'sc1')
GC1 = -2.0 * 0.7978845608028654 * 1.4426950408889634
GC2 = GC1 * 0.044715

def flag_addr(p): return WS_FLAGS + p * 4096

def act_srd(a, ws_off, nplanes):
    a(f"s_add_u32 s{SRD_ACT}, s{ptr(P_WS)}, {ws_off}")
    a(f"s_addc_u32 s{SRD_ACT+1}, s{ptr(P_WS)+1}, 0")
    a(f"s_mov_b32 s{SRD_ACT+2}, {nplanes*PLANE}")
    a(f"s_mov_b32 s{SRD_ACT+3}, 0x00020000")

def poll(a, soff_reg, nlanes, tmp=T0):
    lp = a.new_label('L_poll'); dn = a.new_label('L_polld')
    a(f"v_lshlrev_b32 v{tmp}, 2, v1")
    a(f"s_mov_b64 exec, {hex((1 << nlanes) - 1)}")
    a(f"s_mov_b32 s{S_SPIN}, 0x40000")
    a.label(lp)
    a(f"buffer_load_dword v{tmp+1}, v{tmp}, s[{SRD_WS}:{SRD_WS+3}], s{soff_reg} offen sc1")
    a("s_waitcnt vmcnt(0)")
    a(f"v_cmp_ne_u32 vcc, s{FLAGV}, v{tmp+1}")
    a(f"s_sub_u32 s{S_SPIN}, s{S_SPIN}, 1")
    a("s_nop 2")
    a(f"s_cbranch_vccz {dn}")
    a("s_sleep 1")
    a(f"s_cmp_lg_u32 s{S_SPIN}, 0")
    a(f"s_cbranch_scc1 {lp}")
    a.label(dn)
    a("s_mov_b64 exec, -1")

def signal(a, soff_reg, force_sc1=False, tmp=T0):
    a("s_waitcnt vmcnt(0)")
    a(f"v_mov_b32 v{tmp}, s{FLAGV}")
    a(f"v_mov_b32 v{tmp+1}, 0")
    a("s_mov_b64 exec, 1")
    st_variants(a, lambda m: a(f"buffer_store_dword v{tmp}, v{tmp+1}, s[{SRD_WS}:{SRD_WS+3}], s{soff_reg} offen {m}"), force_sc1)
    a("s_mov_b64 exec, -1")

def st_variants(a, emit, force_sc1=False, cond=None):
    if force_sc1:
        emit('sc1'); return
    c = globals()['LOCAL'] if cond is None else cond
    l1 = a.new_label('L_sv'); l2 = a.new_label('L_sv')
    a(f"s_cmp_eq_u32 s{c}, 0")
    a(f"s_cbranch_scc1 {l1}")
    emit('')
    a(f"s_branch {l2}")
    a.label(l1)
    emit('sc1')
    a.label(l2)

def mf16(d, wa, ac): return f"v_mfma_f32_16x16x32_bf16 v[{d}:{d+3}], v[{wa}:{wa+3}], v[{ac}:{ac+3}], v[{d}:{d+3}]"

def act_load(a, reg):
    if not NOACT: a(f"buffer_load_dwordx4 v[{reg}:{reg+3}], v{V_ACTOFF}, s[{SRD_ACT}:{SRD_ACT+3}], s{S_LO} offen {ACTSC}")
    a(f"s_add_u32 s{S_LO}, s{S_LO}, {4*PLANE}")

def slot_advance(a):
    a(f"s_add_u32 s{S_SLOT}, s{S_SLOT}, {SLOT}")
    a(f"s_cmp_eq_u32 s{S_SLOT}, {5*SLOT}")
    a(f"s_cselect_b32 s{S_SLOT}, 0, s{S_SLOT}")
    a(f"v_lshl_add_u32 v{V_WADDR}, v1, 4, s{S_SLOT}")

def wread5(a, buf, q):
    for tt in range(5):
        a(f"ds_read_b128 v[{WB[buf]+4*tt}:{WB[buf]+4*tt+3}], v{V_WADDR} offset:{(q*5+tt)*1024}")

def gemm5(a):
    for r in range(20): a(f"v_mov_b32 v{ACC+r}, 0")
    for q in range(5): act_load(a, ACT + 4*q)
    a(f"s_add_u32 s{S_LO}, s{S_LO}, s{S_DA}")
    for q in range(5): act_load(a, ACT + 20 + 4*q)
    a(f"s_add_u32 s{S_LO}, s{S_LO}, s{S_DB}")
    a(f"s_mov_b32 s{S_DB}, s{S_DC}")
    a(f"s_mov_b32 s{S_DC}, 0")
    a(f"s_mov_b32 s{S_CCH}, 0")
    wread5(a, 0, 0)
    a.label("L_g5_loop")
    buf = 0
    for half in range(2):
        for q in range(5):
            areg = ACT + 20*half + 4*q
            if q == 4 and half == 0:
                a(f"s_add_u32 s24, s{S_CCH}, 1")
                a(f"s_cmp_eq_u32 s24, 11")
                a("s_cbranch_scc1 L_g5_part")
            a("s_waitcnt vmcnt(9) lgkmcnt(0)")
            if q == 4:
                a("s_barrier")
                slot_advance(a)
                wread5(a, 1 - buf, 0)
            else:
                wread5(a, 1 - buf, q + 1)
            for tt in range(5):
                a(mf16(ACC + 4*tt, WB[buf] + 4*tt, areg))
            act_load(a, areg)
            buf = 1 - buf
        a(f"s_add_u32 s{S_LO}, s{S_LO}, s{S_DB}")
        a(f"s_mov_b32 s{S_DB}, 0")
        a(f"s_add_u32 s{S_CCH}, s{S_CCH}, 1")
        if half == 0:
            pass
    assert buf == 0
    a(f"s_cmp_lt_u32 s{S_CCH}, s{S_NCH}")
    a("s_cbranch_scc1 L_g5_loop")
    a("s_branch L_g5_done")
    a.label("L_g5_part")
    a.label("L_g5_done")
    a("s_waitcnt vmcnt(0) lgkmcnt(0)")

def gen_chain(a, name='chain_kernel', fused=False):
    if not fused:
        header(a, name)
    END = 'L_ch_end'
    if not fused:
        stamp(a, 0, off=True)
        prologue(a, end_label=END)
        lane_ids(a)
        a(f"""
        s_and_b32 s{W_}, s{S_WAVE}, 3
        s_lshl_b32 s{ROW0}, s{S_X}, 8
        s_lshl_b32 s24, s{S_B}, 6
        s_add_u32 s{ROW0}, s{ROW0}, s24
        s_lshr_b32 s{M_}, s{ROW0}, 4
        s_add_u32 s{M_}, s{M_}, s{W_}
        s_mov_b32 s{FLAGV}, 1
        s_mov_b32 s{LOCAL}, {LOCALV}
        """)
    a(f"""
    v_cmp_gt_u32 vcc, 20, v0
    s_and_saveexec_b64 s[30:31], vcc
    s_cbranch_execz L_ch_mv
    v_lshlrev_b32 v{T0}, 4, v0
    s_mul_i32 s24, s{S_J}, 320
    s_add_u32 s25, s24, {WS_MOD + 2*2560}
    buffer_load_dwordx4 v[8:11], v{T0}, s[{SRD_WS}:{SRD_WS+3}], s25 offen
    s_add_u32 s25, s24, {WS_MOD + 4*2560}
    buffer_load_dwordx4 v[12:15], v{T0}, s[{SRD_WS}:{SRD_WS+3}], s25 offen
    s_add_u32 s25, s24, {WS_MOD + 3*2560}
    buffer_load_dwordx4 v[16:19], v{T0}, s[{SRD_WS}:{SRD_WS+3}], s25 offen
    s_add_u32 s25, s24, {WS_MOD + 5*2560}
    buffer_load_dwordx4 v[20:23], v{T0}, s[{SRD_WS}:{SRD_WS+3}], s25 offen
    s_add_u32 s25, s24, {WS_CV + CV_G}
    buffer_load_dwordx4 v[24:27], v{T0}, s[{SRD_WS}:{SRD_WS+3}], s25 offen
    s_add_u32 s25, s24, {WS_CV + CV_B}
    buffer_load_dwordx4 v[28:31], v{T0}, s[{SRD_WS}:{SRD_WS+3}], s25 offen
    s_add_u32 s25, s24, {WS_CV + CV_C}
    buffer_load_dwordx4 v[32:35], v{T0}, s[{SRD_WS}:{SRD_WS+3}], s25 offen
    s_waitcnt vmcnt(0)
    v_add_f32 v12, 1.0, v12
    v_add_f32 v13, 1.0, v13
    v_add_f32 v14, 1.0, v14
    v_add_f32 v15, 1.0, v15
    v_cvt_pk_bf16_f32 v36, v12, v13
    v_cvt_pk_bf16_f32 v37, v14, v15
    v_lshlrev_b32 v12, 16, v36
    v_and_b32 v13, 0xffff0000, v36
    v_lshlrev_b32 v14, 16, v37
    v_and_b32 v15, 0xffff0000, v37
    v_add_u32 v{T0}, {L_MISC}, v{T0}
    ds_write_b128 v{T0}, v[8:11]
    ds_write_b128 v{T0}, v[12:15] offset:320
    ds_write_b128 v{T0}, v[16:19] offset:640
    ds_write_b128 v{T0}, v[20:23] offset:960
    ds_write_b128 v{T0}, v[24:27] offset:1280
    ds_write_b128 v{T0}, v[28:31] offset:1600
    ds_write_b128 v{T0}, v[32:35] offset:1920
    """)
    a.label("L_ch_mv")
    a("s_mov_b64 exec, s[30:31]")
    a(f"""
    s_and_b32 s24, s{S_T}, 15
    s_mul_i32 s25, s24, 448
    s_sub_u32 s26, s24, 12
    s_mul_i32 s26, s26, 384
    s_add_u32 s26, s26, {1344*4}
    s_cmp_lt_u32 s24, 12
    s_cselect_b32 s25, s25, s26
    s_add_u32 s25, s25, {WS_CV + CV_S3}
    v_subrev_u32 v{T0+1}, 64, v0
    v_cmp_gt_u32 vcc, 28, v{T0+1}
    s_and_saveexec_b64 s[30:31], vcc
    s_cbranch_execz L_ch_s3
    v_lshlrev_b32 v{T0}, 4, v{T0+1}
    buffer_load_dwordx4 v[8:11], v{T0}, s[{SRD_WS}:{SRD_WS+3}], s25 offen
    s_waitcnt vmcnt(0)
    v_add_u32 v{T0}, {L_S3}, v{T0}
    ds_write_b128 v{T0}, v[8:11]
    """)
    a.label("L_ch_s3")
    a("s_mov_b64 exec, s[30:31]")
    a("s_waitcnt lgkmcnt(0)")
    a(f"s_cmp_ge_u32 s{S_WAVE}, 4")
    a("s_cbranch_scc1 L_ch_loader")
    gen_compute(a, fused)
    a(f"s_branch {END}")
    a.label("L_ch_loader")
    gen_loader(a)
    a.label(END)
    if not fused:
        a("s_endpgm")

def gen_loader(a):
    G, STEP, LEFT, PH, SL, N = 81, 82, 83, 84, 85, 86
    VA, VB = 4, 5
    a(f"""
    s_sub_u32 s24, s{S_WAVE}, 4
    s_mul_i32 s87, s24, 7168
    v_lshlrev_b32 v{VA}, 4, v1
    v_mov_b32 v6, 0x7ffffff0
    s_cmp_eq_u32 s24, 3
    s_cselect_b64 vcc, -1, 0
    v_mov_b32 v7, v{VA}
    s_nop 0
    v_cndmask_b32 v6, v{VA}, v6, vcc
    v_mov_b32 v{VB}, v6
    s_mul_i32 s{G}, s{S_J}, 102400
    s_add_u32 s{G}, s{G}, {WS_WO}
    s_mov_b32 s{STEP}, 25600
    s_mov_b32 s{LEFT}, 4
    s_mov_b32 s{PH}, 0
    s_mov_b32 s{SL}, 0
    s_mov_b32 s{N}, 0
    """)
    def issue():
        a(f"s_add_u32 s24, s{SL}, s87")
        a(f"s_add_u32 s25, s{G}, s87")
        a(f"s_mov_b32 m0, s24")
        a(f"s_add_u32 s26, s25, 4096")
        for q in range(4):
            if not NOWDMA: a(f"buffer_load_dwordx4 v{VA}, s[{SRD_WS}:{SRD_WS+3}], s25 offen offset:{1024*q} lds")
        a(f"s_add_u32 m0, s24, 4096")
        a(f"s_add_u32 s{G}, s{G}, s{STEP}")
        for q in range(3):
            if not NOWDMA: a(f"buffer_load_dwordx4 v{VB}, s[{SRD_WS}:{SRD_WS+3}], s26 offen offset:{1024*q} lds")
        a(f"s_add_u32 s{SL}, s{SL}, {SLOT}")
        a(f"s_cmp_eq_u32 s{SL}, {5*SLOT}")
        a(f"s_cselect_b32 s{SL}, 0, s{SL}")
        lab = a.new_label('L_ld_sw')
        a(f"s_sub_u32 s{LEFT}, s{LEFT}, 1")
        a(f"s_cmp_lg_u32 s{LEFT}, 0")
        a(f"s_cbranch_scc1 {lab}")
        a(f"s_add_u32 s{PH}, s{PH}, 1")
        l1, l2, l3, l4, l5 = (a.new_label('L_ld_p') for _ in range(5))
        a(f"s_cmp_eq_u32 s{PH}, 1"); a(f"s_cbranch_scc1 {l1}")
        a(f"s_cmp_eq_u32 s{PH}, 2"); a(f"s_cbranch_scc1 {l2}")
        a(f"s_cmp_eq_u32 s{PH}, 3"); a(f"s_cbranch_scc1 {l3}")
        a(f"s_cmp_eq_u32 s{PH}, 4"); a(f"s_cbranch_scc1 {l4}")
        a(f"v_mov_b32 v{VA}, 0x7ffffff0"); a(f"v_mov_b32 v{VB}, 0x7ffffff0"); a(f"s_mov_b32 s{LEFT}, 100"); a(f"s_mov_b32 s{STEP}, 0"); a(f"s_branch {lab}")
        for l, ws in ((l1, WS_W1), (l2, WS_W2)):
            a.label(l)
            a(f"s_mul_i32 s{G}, s{S_J}, 102400"); a(f"s_add_u32 s{G}, s{G}, {ws}"); a(f"s_mov_b32 s{LEFT}, 4"); a(f"s_branch {lab}")
        a.label(l3)
        a(f"s_and_b32 s24, s{S_T}, 15"); a(f"s_mul_i32 s{G}, s24, 143360"); a(f"s_add_u32 s{G}, s{G}, {WS_W3}")
        a(f"s_mov_b32 s{STEP}, 28672"); a(f"s_mov_b32 s{LEFT}, 5"); a(f"v_mov_b32 v{VB}, v7"); a(f"s_branch {lab}")
        a.label(l4)
        a(f"s_mul_i32 s{G}, s{S_J}, 276480"); a(f"s_add_u32 s{G}, s{G}, {WS_W4}")
        a(f"s_mov_b32 s{STEP}, 25600"); a(f"s_mov_b32 s{LEFT}, 11"); a(f"v_mov_b32 v{VB}, v6")
        a.label(lab)
    a.label("L_ld_pro")
    issue_lab = "L_ld_issue"
    a(f"s_cmp_lt_u32 s{N}, 4")
    a(f"s_cbranch_scc1 {issue_lab}")
    if common.STAMP:
        a("s_memtime s[98:99]"); a("s_waitcnt lgkmcnt(0)"); a(f"s_sub_u32 s24, s{N}, 4"); a("s_nop 4"); a("v_mov_b32 v249, s98"); a("v_cmp_eq_u32 vcc, s24, v1"); a("s_nop 1"); a("v_cndmask_b32 v250, v250, v249, vcc")
    a("s_waitcnt vmcnt(21)")
    if common.STAMP:
        a("s_memtime s[98:99]"); a("s_waitcnt lgkmcnt(0)"); a("v_mov_b32 v249, s98"); a("v_cmp_eq_u32 vcc, s24, v1"); a("s_nop 1"); a("v_cndmask_b32 v251, v251, v249, vcc")
    a("s_barrier")
    if common.STAMP:
        a("s_memtime s[98:99]"); a("s_waitcnt lgkmcnt(0)"); a("v_mov_b32 v249, s98"); a("v_cmp_eq_u32 vcc, s24, v1"); a("s_nop 1"); a("v_cndmask_b32 v252, v252, v249, vcc")
    a.label(issue_lab)
    issue()
    a(f"s_add_u32 s{N}, s{N}, 1")
    a(f"s_cmp_lt_u32 s{N}, {4 + 28}")
    a("s_cbranch_scc1 L_ld_pro")
    a("s_waitcnt vmcnt(0)")
    if common.STAMP:
        lab = a.new_label('L_lds')
        a(f"s_cmp_lg_u32 s2, 0"); a(f"s_cbranch_scc1 {lab}")
        a(f"s_cmp_lg_u32 s{S_WAVE}, 4"); a(f"s_cbranch_scc1 {lab}")
        a("v_lshlrev_b32 v8, 2, v1")
        a(f"s_mov_b32 s24, {WS_DBG1}")
        for k in range(3):
            a(f"buffer_store_dword v{250+k}, v8, s[{SRD_WS}:{SRD_WS+3}], s24 offen offset:{256*k}")
        a.label(lab)

def unpack_bf16x4(a, dst, lo, hi):
    a(f"v_lshlrev_b32 v{dst}, 16, v{lo}"); a(f"v_and_b32 v{dst+1}, 0xffff0000, v{lo}")
    a(f"v_lshlrev_b32 v{dst+2}, 16, v{hi}"); a(f"v_and_b32 v{dst+3}, 0xffff0000, v{hi}")

def vec_read(a, dst, ldsoff, vaddr):
    for t in range(5):
        a(f"ds_read_b128 v[{dst+4*t}:{dst+4*t+3}], v{vaddr} offset:{ldsoff + 64*t}")

def store_pi(a, src, ws_off, force_cond=None):
    P = ACT
    for t in range(5):
        a(f"v_cvt_pk_bf16_f32 v{P+2*t}, v{src+4*t}, v{src+4*t+1}")
        a(f"v_cvt_pk_bf16_f32 v{P+2*t+1}, v{src+4*t+2}, v{src+4*t+3}")
    a(f"""
    s_lshr_b32 s26, s{S_J}, 1
    s_mul_i32 s26, s26, 5
    s_and_b32 s27, s{S_J}, 1
    s_lshl_b32 s28, s27, 1
    s_add_u32 s28, s28, s26
    s_mul_i32 s28, s28, {4*PLANE}
    s_add_u32 s28, s28, {ws_off}
    s_add_u32 s26, s26, 4
    s_mul_i32 s26, s26, {4*PLANE}
    s_lshl_b32 s27, s27, 3
    s_add_u32 s26, s26, s27
    s_add_u32 s26, s26, {ws_off}
    s_add_u32 s27, s28, {4*PLANE}
    """)
    def emit(m):
        a(f"buffer_store_dwordx4 v[{P}:{P+3}], v{V_ACTOFF}, s[{SRD_WS}:{SRD_WS+3}], s28 offen {m}")
        a(f"buffer_store_dwordx4 v[{P+4}:{P+7}], v{V_ACTOFF}, s[{SRD_WS}:{SRD_WS+3}], s27 offen {m}")
        a(f"buffer_store_dwordx2 v[{P+8}:{P+9}], v{V_ACTOFF}, s[{SRD_WS}:{SRD_WS+3}], s26 offen {m}")
    st_variants(a, emit, cond=force_cond)

def flag_off(a, dst, p, mreg, jreg, stride=32):
    a(f"s_mul_i32 s{dst}, s{mreg}, {stride}")
    a(f"s_lshl_b32 s29, s{jreg}, 2")
    a(f"s_add_u32 s{dst}, s{dst}, s29")
    a(f"s_add_u32 s{dst}, s{dst}, {flag_addr(p)}")

def gelu_inplace(a, regs, tmp):
    c1 = hex(f32bits(GC1)); c2 = hex(f32bits(GC2))
    a(f"v_mov_b32 v{T0+10}, {c1}")
    a(f"s_mov_b32 s29, {c2}")
    for r, t in zip(regs, tmp): a(f"v_mul_f32 v{t}, v{r}, v{r}")
    for r, t in zip(regs, tmp): a(f"v_fma_f32 v{t}, v{t}, s29, v{T0+10}")
    for r, t in zip(regs, tmp): a(f"v_mul_f32 v{t}, v{r}, v{t}")
    for r, t in zip(regs, tmp): a(f"v_exp_f32 v{t}, v{t}")
    for r, t in zip(regs, tmp): a(f"v_add_f32 v{t}, 1.0, v{t}")
    for r, t in zip(regs, tmp): a(f"v_rcp_f32 v{t}, v{t}")
    for r, t in zip(regs, tmp): a(f"v_mul_f32 v{r}, v{r}, v{t}")

def gen_compute(a, fused):
    VM = 6
    a(f"""
    v_mul_u32_u24 v{V_ACTOFF}, {PLANE}, v3
    v_lshl_add_u32 v{V_ACTOFF}, v2, 4, v{V_ACTOFF}
    s_lshl_b32 s24, s{M_}, 8
    s_add_u32 s24, s24, {GUARD*16}
    v_add_u32 v{V_ACTOFF}, s24, v{V_ACTOFF}
    v_lshlrev_b32 v{VM}, 4, v3
    v_add_u32 v{VM}, {L_MISC}, v{VM}
    """)
    srd(a, SRD_B, P_X)
    a(f"""
    s_lshl_b32 s24, s{M_}, 4
    v_add_u32 v7, s24, v2
    v_mul_u32_u24 v7, 1280, v7
    v_lshl_add_u32 v7, v3, 3, v7
    s_mul_i32 s24, s{S_J}, 160
    """)
    for t in range(5):
        a(f"buffer_load_dwordx2 v[{Y1+2*t}:{Y1+2*t+1}], v7, s[{SRD_B}:{SRD_B+3}], s24 offen offset:{32*t}")
    if fused:
        a(f"v_mov_b32 v{T0}, {L_MISC + 5248}")
        a(f"ds_read_b128 v[{ACT}:{ACT+3}], v{T0}")
        a(f"ds_read_b32 v{ACT+4}, v{T0} offset:16")
        a("s_waitcnt vmcnt(0) lgkmcnt(0)")
        for t in range(5):
            unpack_bf16x4(a, X1 + 4*t, Y1 + 2*t, Y1 + 2*t + 1)
        for q in range(5): a(f"v_readfirstlane_b32 s{91+q}, v{ACT+q}")
    else:
        a(f"v_lshlrev_b32 v{T0}, 2, v1")
        a(f"s_mov_b32 s24, {WS_MOD + 3*2560}")
        a(f"s_mov_b32 s25, {WS_MOD + 4*2560}")
        for q in range(10):
            a(f"buffer_load_dword v{ACT+q}, v{T0}, s[{SRD_WS}:{SRD_WS+3}], s24 offen offset:{256*q}")
            a(f"buffer_load_dword v{ACT+10+q}, v{T0}, s[{SRD_WS}:{SRD_WS+3}], s25 offen offset:{256*q}")
        a("s_waitcnt vmcnt(0)")
        for t in range(5):
            unpack_bf16x4(a, X1 + 4*t, Y1 + 2*t, Y1 + 2*t + 1)
        for q in range(5): a(f"v_mov_b32 v{ACC+q}, 0")
        for q in range(10):
            g_, s_ = ACT + 10 + q, ACT + q
            a(f"v_add_f32 v{g_}, 1.0, v{g_}")
            a(f"v_cvt_pk_bf16_f32 v{g_}, v{g_}, v{g_}")
            a(f"v_lshlrev_b32 v{g_}, 16, v{g_}")
            a(f"v_add_f32 v{ACC}, v{ACC}, v{g_}")
            a(f"v_fmac_f32 v{ACC+1}, v{g_}, v{g_}")
            a(f"v_fmac_f32 v{ACC+2}, v{g_}, v{s_}")
            a(f"v_add_f32 v{ACC+3}, v{ACC+3}, v{s_}")
            a(f"v_fmac_f32 v{ACC+4}, v{s_}, v{s_}")
        wave_reduce_add_dpp(a, [ACC+q for q in range(5)])
        a("s_nop 1")
        for q in range(5): a(f"v_readlane_b32 s{91+q}, v{ACC+q}, 63")
    a(f"s_mov_b32 s{S_SLOT}, 0")
    a(f"v_lshlrev_b32 v{V_WADDR}, 4, v1")
    stamp(a, 1, off=True)
    a("s_barrier")
    stamp(a, 2, off=True)
    a(f"s_mov_b32 s{S_PH}, 0")
    def setup(ws_off, nplanes, nch, d0=0, d1=0, d2=0, d3=0):
        if d0 or d1:
            act_srd(a, ws_off - 32, nplanes); d0 += 32; d1 += 32; d2 += 32; d3 += 32
        else:
            act_srd(a, ws_off, nplanes)
        a(f"s_mov_b32 s{S_LO}, {d0 & 0xffffffff}")
        a(f"s_mov_b32 s{S_DA}, {(d1-d0) & 0xffffffff}")
        a(f"s_mov_b32 s{S_DB}, {(d2-d1) & 0xffffffff}")
        a(f"s_mov_b32 s{S_DC}, {(d3-d2) & 0xffffffff}")
        a(f"s_mov_b32 s{S_NCH}, {nch}")
    if fused:
        a(f"s_mul_i32 s24, s{M_}, 32"); a(f"s_add_u32 s24, s24, {flag_addr(FL_O)}"); poll(a, 24, 8)
    setup(WS_O, 80, 4)
    a.label("L_g5_entry")
    gemm5(a)
    a("s_nop 7")
    a(f"s_cmp_eq_u32 s{S_PH}, 1"); a("s_cbranch_scc1 L_ep_w1")
    a(f"s_cmp_eq_u32 s{S_PH}, 2"); a("s_cbranch_scc1 L_ep_w2")
    a(f"s_cmp_eq_u32 s{S_PH}, 3"); a("s_cbranch_scc1 L_ep_w4")
    stamp(a, 3, off=True)
    V1, V2 = WB[0], WB[0] + 20
    vec_read(a, V1, 0, VM)
    vec_read(a, V2, 320, VM)
    a("s_waitcnt lgkmcnt(0)")
    for r in range(20): a(f"v_fmac_f32 v{X1+r}, v{V1+r}, v{ACC+r}")
    for r in range(20): a(f"v_mul_f32 v{ACC+r}, v{X1+r}, v{V2+r}")
    store_pi(a, ACC, WS_Z)
    flag_off(a, 25, FL_Z, M_, S_J)
    signal(a, 25)
    vec_read(a, V1, 640, VM)
    S = T0
    a(f"v_mov_b32 v{S}, v{X1}"); a(f"v_mul_f32 v{S+1}, v{X1}, v{X1}")
    a(f"v_mov_b32 v{S+2}, v{ACC}"); a(f"v_mul_f32 v{S+3}, v{ACC}, v{ACC}"); a(f"v_mul_f32 v{S+4}, v{ACC}, v{V2}")
    for r in range(1, 20):
        a(f"v_add_f32 v{S}, v{S}, v{X1+r}"); a(f"v_fmac_f32 v{S+1}, v{X1+r}, v{X1+r}")
        a(f"v_add_f32 v{S+2}, v{S+2}, v{ACC+r}"); a(f"v_fmac_f32 v{S+3}, v{ACC+r}, v{ACC+r}"); a(f"v_fmac_f32 v{S+4}, v{ACC+r}, v{V2+r}")
    a("s_waitcnt lgkmcnt(0)")
    a(f"v_mul_f32 v{S+5}, v{ACC}, v{V1}")
    for r in range(1, 20): a(f"v_fmac_f32 v{S+5}, v{ACC+r}, v{V1+r}")
    reduce_g(a, [S+i for i in range(6)], [ACT+i for i in range(6)])
    a(f"""
    s_lshl_b32 s24, s{M_}, 12
    s_lshl_b32 s26, s{S_J}, 5
    s_add_u32 s24, s24, s26
    s_add_u32 s24, s24, {WS_ST1}
    v_lshlrev_b32 v{ACT+8}, 8, v2
    s_mov_b64 exec, 0xffff
    """)
    def emit(m):
        a(f"buffer_store_dwordx4 v[{S}:{S+3}], v{ACT+8}, s[{SRD_WS}:{SRD_WS+3}], s24 offen {m}")
        a(f"buffer_store_dwordx2 v[{S+4}:{S+5}], v{ACT+8}, s[{SRD_WS}:{SRD_WS+3}], s24 offen offset:16 {m}")
    st_variants(a, emit)
    a("s_mov_b64 exec, -1")
    flag_off(a, 25, FL_S1, M_, S_J)
    signal(a, 25)
    stamp(a, 4, off=True)
    a(f"s_mul_i32 s24, s{M_}, 32"); a(f"s_add_u32 s24, s24, {flag_addr(FL_Z)}"); poll(a, 24, 8)
    stamp(a, 5, off=True)
    setup(WS_Z, 80, 4)
    a(f"s_mov_b32 s{S_PH}, 1")
    a("s_branch L_g5_entry")
    a.label("L_ep_w1")
    stamp(a, 6, off=True)
    a(f"s_mul_i32 s24, s{M_}, 32"); a(f"s_add_u32 s24, s24, {flag_addr(FL_S1)}"); poll(a, 24, 8)
    a(f"""
    s_lshl_b32 s24, s{M_}, 12
    s_add_u32 s24, s24, {WS_ST1}
    v_lshlrev_b32 v{T0}, 8, v2
    v_lshl_add_u32 v{T0}, v3, 6, v{T0}
    buffer_load_dwordx4 v[{ACT}:{ACT+3}], v{T0}, s[{SRD_WS}:{SRD_WS+3}], s24 offen sc1
    buffer_load_dwordx2 v[{ACT+4}:{ACT+5}], v{T0}, s[{SRD_WS}:{SRD_WS+3}], s24 offen offset:16 sc1
    buffer_load_dwordx4 v[{ACT+8}:{ACT+11}], v{T0}, s[{SRD_WS}:{SRD_WS+3}], s24 offen offset:32 sc1
    buffer_load_dwordx2 v[{ACT+12}:{ACT+13}], v{T0}, s[{SRD_WS}:{SRD_WS+3}], s24 offen offset:48 sc1
    """)
    V1, V2, V3 = WB[0], WB[0] + 20, ACT + 20
    vec_read(a, V1, 1280, VM)
    vec_read(a, V2, 1600, VM)
    vec_read(a, V3, 1920, VM)
    a("s_waitcnt vmcnt(0)")
    for i in range(6): a(f"v_add_f32 v{S+i}, v{ACT+i}, v{ACT+8+i}")
    reduce_g(a, [S+i for i in range(6)], [ACT+i for i in range(6)])
    gen_stats_math(a, S)
    a("s_waitcnt lgkmcnt(0)")
    for r in range(20):
        a(f"v_mul_f32 v{V2+r}, v{V2+r}, v{S+5}")
    for r in range(20):
        a(f"v_fmac_f32 v{V2+r}, v{V3+r}, v{S+3}")
    for r in range(20):
        a(f"v_fmac_f32 v{V2+r}, v{V1+r}, v{S+4}")
    for r in range(20):
        a(f"v_fma_f32 v{ACC+r}, v{ACC+r}, v{S+2}, v{V2+r}")
    gelu_inplace(a, [ACC+r for r in range(20)], [V1+r for r in range(20)])
    a(f"""
    s_and_b32 s24, s{M_}, 15
    s_cmp_eq_u32 s24, 0
    s_cselect_b32 s90, 0, s{globals()['LOCAL']}
    s_cmp_eq_u32 s24, 15
    s_cselect_b32 s90, 0, s90
    """)
    store_pi(a, ACC, WS_G, force_cond=90)
    flag_off(a, 25, FL_G, M_, S_J)
    a("s_waitcnt vmcnt(0)")
    a(f"v_mov_b32 v{ACT}, s{FLAGV}"); a(f"v_mov_b32 v{ACT+1}, 0"); a("s_mov_b64 exec, 1")
    st_variants(a, lambda m: a(f"buffer_store_dword v{ACT}, v{ACT+1}, s[{SRD_WS}:{SRD_WS+3}], s25 offen {m}"), cond=90)
    a("s_mov_b64 exec, -1")
    vec_read(a, V1, 320, VM); vec_read(a, V2, 640, VM)
    a("s_waitcnt lgkmcnt(0)")
    for r in range(20):
        a(f"v_sub_f32 v{Y1+r}, v{X1+r}, v{S}")
    for r in range(20):
        a(f"v_mul_f32 v{V1+r}, v{V1+r}, v{S+1}")
    for r in range(20):
        a(f"v_fma_f32 v{Y1+r}, v{Y1+r}, v{V1+r}, v{V2+r}")
    a(f"""
    s_mul_i32 s24, s{M_}, 32
    s_add_u32 s24, s24, {flag_addr(FL_G) - 32}
    s_cmp_eq_u32 s{M_}, 0
    s_cbranch_scc1 L_w1_first
    s_cmp_eq_u32 s{M_}, 127
    s_cbranch_scc1 L_w1_last
    """)
    poll(a, 24, 24); a("s_branch L_w1_go")
    a.label("L_w1_first"); a("s_add_u32 s24, s24, 32")
    a.label("L_w1_last"); poll(a, 24, 16)
    a.label("L_w1_go")
    stamp(a, 7, off=True)
    setup(WS_G, 80, 4, -16, 16, -32, 32)
    a(f"s_mov_b32 s{S_PH}, 2")
    a("s_branch L_g5_entry")
    a.label("L_ep_w2")
    stamp(a, 8, off=True)
    for r in range(20): a(f"v_add_f32 v{Y1+r}, v{Y1+r}, v{ACC+r}")
    store_pi(a, Y1, WS_Y)
    flag_off(a, 25, FL_Y, M_, S_J)
    signal(a, 25)
    a(f"v_mov_b32 v{S}, v{Y1}"); a(f"v_mul_f32 v{S+1}, v{Y1}, v{Y1}")
    for r in range(1, 20):
        a(f"v_add_f32 v{S}, v{S}, v{Y1+r}"); a(f"v_fmac_f32 v{S+1}, v{Y1+r}, v{Y1+r}")
    reduce_g(a, [S, S+1], [ACT, ACT+1])
    a(f"""
    s_lshl_b32 s24, s{M_}, 10
    s_lshl_b32 s26, s{S_J}, 3
    s_add_u32 s24, s24, s26
    s_add_u32 s24, s24, {WS_ST2}
    v_lshlrev_b32 v{ACT+8}, 6, v2
    s_mov_b64 exec, 0xffff
    """)
    st_variants(a, lambda m: a(f"buffer_store_dwordx2 v[{S}:{S+1}], v{ACT+8}, s[{SRD_WS}:{SRD_WS+3}], s24 offen {m}"))
    a("s_mov_b64 exec, -1")
    flag_off(a, 25, FL_S2, M_, S_J)
    signal(a, 25)
    gen_w3(a, setup)
    stamp(a, 11, off=True)
    a(f"s_lshr_b32 s24, s{M_}, 1"); a(f"s_mul_i32 s24, s24, 64"); a(f"s_add_u32 s24, s24, {flag_addr(FL_U)}"); poll(a, 24, 16)
    a(f"""
    v_mul_u32_u24 v{V_ACTOFF}, {PLANE}, v3
    v_lshl_add_u32 v{V_ACTOFF}, v2, 4, v{V_ACTOFF}
    s_lshl_b32 s24, s{M_}, 8
    s_add_u32 s24, s24, {GUARD*16}
    v_add_u32 v{V_ACTOFF}, s24, v{V_ACTOFF}
    """)
    stamp(a, 12, off=True)
    setup(WS_U, 216, 11)
    a(f"s_mov_b32 s{S_PH}, 3")
    a("s_branch L_g5_entry")
    a.label("L_ep_w4")
    stamp(a, 13, off=True)
    V1 = WB[0]
    vec_read(a, V1, 960, VM)
    for r in range(20): a(f"v_add_f32 v{ACC+r}, v{ACC+r}, v{Y1+r}")
    a("s_waitcnt lgkmcnt(0)")
    for r in range(20): a(f"v_fma_f32 v{ACC+r}, v{ACC+r}, v{V1+r}, v{X1+r}")
    for t in range(5):
        a(f"v_cvt_pk_bf16_f32 v{ACT+2*t}, v{ACC+4*t}, v{ACC+4*t+1}")
        a(f"v_cvt_pk_bf16_f32 v{ACT+2*t+1}, v{ACC+4*t+2}, v{ACC+4*t+3}")
    srd(a, SRD_B, P_OUT)
    a(f"s_mul_i32 s24, s{S_J}, 160")
    for t in range(5):
        a(f"buffer_store_dwordx2 v[{ACT+2*t}:{ACT+2*t+1}], v7, s[{SRD_B}:{SRD_B+3}], s24 offen offset:{32*t}")
    if common.STAMP:
        a("s_waitcnt vmcnt(0)")
        stamp(a, 14, off=True)
        stamp_dump(a)

def gen_stats_math(a, S):
    i640 = '0x3acccccd'
    t = ACT + 8
    a(f"""
    v_mul_f32 v{S}, {i640}, v{S}
    v_mul_f32 v{S+1}, {i640}, v{S+1}
    v_fma_f32 v{S+1}, -v{S}, v{S}, v{S+1}
    v_add_f32 v{S+1}, 0x3727c5ac, v{S+1}
    v_rsq_f32 v{S+1}, v{S+1}
    """)
    a(f"""
    v_mov_b32 v{t}, s91
    v_fma_f32 v{t}, -v{S}, v{t}, v{S+2}
    v_mov_b32 v{t+1}, s94
    v_fma_f32 v{t}, v{t}, v{S+1}, v{t+1}
    v_mov_b32 v{t+1}, s92
    v_mul_f32 v{t+1}, v{S}, v{t+1}
    v_fma_f32 v{t+1}, -2.0, v{S+4}, v{t+1}
    v_fma_f32 v{t+1}, v{S}, v{t+1}, v{S+3}
    v_mul_f32 v{t+1}, v{t+1}, v{S+1}
    v_mov_b32 v{t+2}, s93
    v_fma_f32 v{t+2}, -v{S}, v{t+2}, v{S+5}
    v_fma_f32 v{t+1}, 2.0, v{t+2}, v{t+1}
    v_mov_b32 v{t+2}, s95
    v_fma_f32 v{t+1}, v{t+1}, v{S+1}, v{t+2}
    v_mul_f32 v{t}, {i640}, v{t}
    v_mul_f32 v{t+1}, {i640}, v{t+1}
    v_fma_f32 v{t+1}, -v{t}, v{t}, v{t+1}
    v_add_f32 v{t+1}, 0x3727c5ac, v{t+1}
    v_rsq_f32 v{S+5}, v{t+1}
    s_nop 0
    v_mul_f32 v{S+2}, v{S+1}, v{S+5}
    v_mul_f32 v{S+3}, v{S+5}, v{t}
    v_sub_f32 v{S+3}, 0, v{S+3}
    v_mul_f32 v{S+4}, v{S+2}, v{S}
    v_sub_f32 v{S+4}, 0, v{S+4}
    """)

def gen_w3(a, setup):
    M3, JJ = 91 + 5, 91 + 6
    S = T0
    a(f"""
    s_lshl_b32 s{M3}, s{S_X}, 4
    s_lshr_b32 s24, s{S_T}, 4
    s_lshl_b32 s24, s24, 3
    s_add_u32 s{M3}, s{M3}, s24
    s_lshl_b32 s24, s{W_}, 1
    s_add_u32 s{M3}, s{M3}, s24
    s_and_b32 s{JJ}, s{S_T}, 15
    s_mul_i32 s24, s{M3}, 32
    s_add_u32 s24, s24, {flag_addr(FL_Y)}
    """)
    poll(a, 24, 16)
    stamp(a, 9, off=True)
    a(f"""
    v_mul_u32_u24 v{V_ACTOFF}, {PLANE}, v3
    v_lshl_add_u32 v{V_ACTOFF}, v2, 4, v{V_ACTOFF}
    s_lshl_b32 s24, s{M3}, 8
    s_add_u32 s24, s24, {GUARD*16}
    v_add_u32 v{V_ACTOFF}, s24, v{V_ACTOFF}
    """)
    act_srd(a, WS_Y, 80)
    a(f"s_mov_b32 s{S_LO}, 0")
    ACC3 = ACC
    for r in range(56): a(f"v_mov_b32 v{ACC3+r}, 0")
    def aload(slot):
        r = ACT + 8*slot
        a(f"buffer_load_dwordx4 v[{r}:{r+3}], v{V_ACTOFF}, s[{SRD_ACT}:{SRD_ACT+3}], s{S_LO} offen sc1")
        a(f"buffer_load_dwordx4 v[{r+4}:{r+7}], v{V_ACTOFF}, s[{SRD_ACT}:{SRD_ACT+3}], s{S_LO} offen offset:256 sc1")
        a(f"s_add_u32 s{S_LO}, s{S_LO}, {4*PLANE}")
    def wread7(buf, q):
        for tt in range(7):
            a(f"ds_read_b128 v[{WB[buf]+4*tt}:{WB[buf]+4*tt+3}], v{V_WADDR} offset:{(q*7+tt)*1024}")
    for k in range(8): aload(k)
    wread7(0, 0)
    a(f"s_mov_b32 s{S_CCH}, 0")
    a.label("L_w3_loop")
    buf = 0
    for half in range(2):
        for q in range(4):
            sl = 4*half + q
            a("s_waitcnt vmcnt(14) lgkmcnt(0)")
            if q == 3:
                a("s_barrier")
                slot_advance(a)
                wread7(1 - buf, 0)
            else:
                wread7(1 - buf, q + 1)
            for tt in range(7):
                a(mf16(ACC3 + 4*tt, WB[buf] + 4*tt, ACT + 8*sl))
                a(mf16(ACC3 + 28 + 4*tt, WB[buf] + 4*tt, ACT + 8*sl + 4))
            aload(sl)
            buf = 1 - buf
        a(f"s_add_u32 s{S_CCH}, s{S_CCH}, 1")
        if half == 0:
            a(f"s_cmp_eq_u32 s{S_CCH}, 5")
            a("s_cbranch_scc1 L_w3_done")
    a("s_branch L_w3_loop")
    a.label("L_w3_done")
    a("s_waitcnt vmcnt(0) lgkmcnt(0)")
    a("s_nop 7")
    stamp(a, 10, off=True)
    a(f"s_mul_i32 s24, s{M3}, 32"); a(f"s_add_u32 s24, s24, {flag_addr(FL_S2)}"); poll(a, 24, 16)
    a(f"""
    s_lshl_b32 s24, s{M3}, 10
    s_add_u32 s24, s24, {WS_ST2}
    v_lshlrev_b32 v{S}, 6, v2
    v_lshl_add_u32 v{S}, v3, 4, v{S}
    buffer_load_dwordx4 v[{ACT}:{ACT+3}], v{S}, s[{SRD_WS}:{SRD_WS+3}], s24 offen sc1
    buffer_load_dwordx4 v[{ACT+4}:{ACT+7}], v{S}, s[{SRD_WS}:{SRD_WS+3}], s24 offen offset:1024 sc1
    v_lshlrev_b32 v{S+6}, 4, v3
    v_add_u32 v{S+6}, {L_S3}, v{S+6}
    """)
    CS = WB[1]
    a("s_waitcnt lgkmcnt(0)")
    for tt in range(7):
        a(f"ds_read_b128 v[{CS+4*tt}:{CS+4*tt+3}], v{S+6} offset:{64*tt}")
    a("s_waitcnt vmcnt(0)")
    a(f"v_add_f32 v{S}, v{ACT}, v{ACT+2}"); a(f"v_add_f32 v{S+1}, v{ACT+1}, v{ACT+3}")
    a(f"v_add_f32 v{S+2}, v{ACT+4}, v{ACT+6}"); a(f"v_add_f32 v{S+3}, v{ACT+5}, v{ACT+7}")
    reduce_g(a, [S, S+1, S+2, S+3], [ACT+8, ACT+9, ACT+10, ACT+11])
    i640 = '0x3acccccd'
    for k in (0, 2):
        a(f"v_mul_f32 v{S+k}, {i640}, v{S+k}")
        a(f"v_mul_f32 v{S+k+1}, {i640}, v{S+k+1}")
        a(f"v_fma_f32 v{S+k+1}, -v{S+k}, v{S+k}, v{S+k+1}")
        a(f"v_add_f32 v{S+k+1}, 0x3727c5ac, v{S+k+1}")
        a(f"v_rsq_f32 v{S+k+1}, v{S+k+1}")
    a("s_waitcnt lgkmcnt(0)")
    for rt in range(2):
        for r in range(28):
            a(f"v_fma_f32 v{ACC3+28*rt+r}, -v{S+2*rt}, v{CS+r}, v{ACC3+28*rt+r}")
        for r in range(28):
            a(f"v_mul_f32 v{ACC3+28*rt+r}, v{ACC3+28*rt+r}, v{S+2*rt+1}")
        gelu_inplace(a, [ACC3+28*rt+r for r in range(28)], [WB[0]+r for r in range(28)])
    P = ACT
    for rt in range(2):
        for tt in range(7):
            a(f"v_cvt_pk_bf16_f32 v{P+16*rt+2*tt}, v{ACC3+28*rt+4*tt}, v{ACC3+28*rt+4*tt+1}")
            a(f"v_cvt_pk_bf16_f32 v{P+16*rt+2*tt+1}, v{ACC3+28*rt+4*tt+2}, v{ACC3+28*rt+4*tt+3}")
    a(f"""
    s_mul_i32 s26, s{JJ}, {3*4*PLANE}
    s_add_u32 s26, s26, {WS_U}
    s_add_u32 s27, s26, {4*PLANE}
    s_add_u32 s28, s26, {8*PLANE}
    s_lshr_b32 s24, s{JJ}, 1
    s_add_u32 s24, s24, 48
    s_mul_i32 s24, s24, {4*PLANE}
    s_and_b32 s29, s{JJ}, 1
    s_lshl_b32 s29, s29, 3
    s_add_u32 s24, s24, s29
    s_add_u32 s24, s24, {WS_U}
    """)
    def emit(m):
        for rt in range(2):
            for p, sr in enumerate((26, 27, 28)):
                a(f"buffer_store_dwordx4 v[{P+16*rt+4*p}:{P+16*rt+4*p+3}], v{V_ACTOFF}, s[{SRD_WS}:{SRD_WS+3}], s{sr} offen offset:{256*rt} {m}")
        lab = a.new_label('L_u6')
        a(f"s_cmp_ge_u32 s{JJ}, 12"); a(f"s_cbranch_scc1 {lab}")
        for rt in range(2):
            a(f"buffer_store_dwordx2 v[{P+16*rt+12}:{P+16*rt+13}], v{V_ACTOFF}, s[{SRD_WS}:{SRD_WS+3}], s24 offen offset:{256*rt} {m}")
        a.label(lab)
    st_variants(a, emit)
    a(f"s_lshr_b32 s24, s{M3}, 1"); a(f"s_mul_i32 s25, s24, 64"); a(f"s_lshl_b32 s29, s{JJ}, 2"); a("s_add_u32 s25, s25, s29"); a(f"s_add_u32 s25, s25, {flag_addr(FL_U)}")
    signal(a, 25)
```

```python
from common import *
import common
from k_qkv import f32bits
from k_chain import (flag_addr, act_srd, st_variants, mf16, unpack_bf16x4, flag_off, GC1, GC2,
                     FL_O, FL_Z, FL_S1, FL_G, FL_Y, FL_S2, FL_U)
import k_chain as C1

V_ACTOFF, V_W0, V_W1, VM, V_XOFF = 4, 5, 6, 7, 3
V_XOFF = 0
X1, Y1, ACC = 8, 28, 48
WB = (104, 124, 144)
WB3 = (104, 132)
ACT = 164
T0 = 244
L_MISC = 145408
W_, ROW0, M_, FLAGV, LOCAL = 75, 77, 78, 79, 100
SRD_ACT = SRD_A
S_LO, S_DA, S_DB, S_DC, S_CCH, S_PH = 81, 82, 83, 84, 86, 88
S_SPIN = 101
SWS = f"s[{SRD_WS}:{SRD_WS+3}]"
SACT = f"s[{SRD_ACT}:{SRD_ACT+3}]"
import os
SLOT4 = 30720
PREW = os.environ.get('PREW', '1') == '1'
BUF_G = WS_O
BUF_Y = WS_Z
WNT = os.environ.get('WNT', '')
FINE = bool(os.environ.get('FINE')); FINE2 = bool(os.environ.get('FINE2')); FINE4 = bool(os.environ.get('FINE4'))

def poll(a, soff_reg, nlanes, tmp=T0, stride_sh=2):
    lp = a.new_label('L_poll'); dn = a.new_label('L_polld')
    a(f"v_lshlrev_b32 v{tmp}, {stride_sh}, v1")
    a(f"s_mov_b64 exec, {hex((1 << nlanes) - 1)}")
    a(f"s_mov_b32 s{S_SPIN}, 0x40000")
    a.label(lp)
    a(f"buffer_load_dword v{tmp+1}, v{tmp}, {SWS}, s{soff_reg} offen sc1")
    a("s_waitcnt vmcnt(0)")
    a(f"v_cmp_ne_u32 vcc, s{FLAGV}, v{tmp+1}")
    a(f"s_sub_u32 s{S_SPIN}, s{S_SPIN}, 1")
    a("s_cmp_eq_u64 vcc, 0")
    a(f"s_cbranch_scc1 {dn}")
    a(f"s_cmp_lg_u32 s{S_SPIN}, 0")
    a(f"s_cbranch_scc1 {lp}")
    a.label(dn)
    a("s_mov_b64 exec, -1")

def signal(a, soff_reg, cond=None, tmp=T0):
    a("s_waitcnt vmcnt(0)")
    a(f"v_mov_b32 v{tmp}, s{FLAGV}")
    a(f"v_mov_b32 v{tmp+1}, 0")
    a("s_mov_b64 exec, 1")
    st_variants(a, lambda m: a(f"buffer_store_dword v{tmp}, v{tmp+1}, {SWS}, s{soff_reg} offen {m}"), cond=cond)
    a("s_mov_b64 exec, -1")

def act_load(a, reg, off=0):
    a(f"buffer_load_dwordx4 v[{reg}:{reg+3}], v{V_ACTOFF}, {SACT}, s{S_LO} offen" + (f" offset:{off}" if off else "") + " sc1")
def lo_step(a): a(f"s_add_u32 s{S_LO}, s{S_LO}, {4*PLANE}")

def set_actoff(a, mreg):
    a(f"v_mul_u32_u24 v{V_ACTOFF}, {PLANE}, v3")
    a(f"v_lshl_add_u32 v{V_ACTOFF}, v2, 4, v{V_ACTOFF}")
    a(f"s_lshl_b32 s24, s{mreg}, 8")
    a(f"s_add_u32 s24, s24, {GUARD*16}")
    a(f"v_add_u32 v{V_ACTOFF}, s24, v{V_ACTOFF}")

NWIN = int(os.environ.get('NWIN', '8'))
def act_issue(a, t):
    act_load(a, ACT + 4*t); lo_step(a)
    if t == 4: a(f"s_add_u32 s{S_LO}, s{S_LO}, s{S_DA}")
    if t == 9: a(f"s_add_u32 s{S_LO}, s{S_LO}, s{S_DB}")
    if t == 14: a(f"s_add_u32 s{S_LO}, s{S_LO}, s{S_DC}")
def issue_acts20(a):
    for t in range(NWIN): act_issue(a, t)

def gemm20(a):
    def wread(t):
        b = WB[t % 3]; va = V_W0 if t < 10 else V_W1; o = (t % 10) * 5120
        for tt in range(5): a(f"ds_read_b128 v[{b+4*tt}:{b+4*tt+3}], v{va} offset:{o + 1024*tt}")
    wread(0); wread(1)
    for r in range(0, 20, 2): a(f"v_mov_b64 v[{ACC+r}:{ACC+r+1}], 0")
    for t in range(20):
        issued = min(20, t + NWIN)
        a(f"s_waitcnt vmcnt({issued-1-t}) lgkmcnt({5 if t < 19 else 0})")
        if FINE2 and t in (0, 5, 10): stamp(a, {0: 11, 5: 12, 10: 13}[t])
        if t + 2 < 20: wread(t + 2)
        for tt in range(5): a(mf16(ACC + 4*tt, WB[t % 3] + 4*tt, ACT + 4*t))
        if t + NWIN < 20: act_issue(a, t + NWIN)

L_ST = L_MISC + 6400
def vec_read(a, dst, ldsoff, n=5):
    for t in range(n): a(f"ds_read_b128 v[{dst+4*t}:{dst+4*t+3}], v{VM} offset:{ldsoff + 64*t}")

def pk(op, d, x, y, z=None):
    s_ = f"v_pk_{op}_f32 v[{d}:{d+1}], v[{x}:{x+1}], v[{y}:{y+1}]"
    if z is not None: s_ += f", v[{z}:{z+1}]"
    return s_
def pk_bcast(op, d, x, sreg_pair_lo, z=None):
    return pk(op, d, x, sreg_pair_lo, z)

def pack_store_pi(a, src, ws_off, cond=None, force=False, half_sc1=False):
    P = ACT
    for t in range(5):
        a(f"v_cvt_pk_bf16_f32 v{P+2*t}, v{src+4*t}, v{src+4*t+1}")
        a(f"v_cvt_pk_bf16_f32 v{P+2*t+1}, v{src+4*t+2}, v{src+4*t+3}")
    a(f"s_add_u32 s28, s97, {ws_off}")
    a(f"s_add_u32 s27, s28, {4*PLANE}")
    a(f"s_add_u32 s26, s96, {ws_off}")
    if half_sc1:
        a(f"buffer_store_dwordx2 v[{P+8}:{P+9}], v{V_ACTOFF}, {SWS}, s26 offen sc1")
    def emit(m):
        a(f"buffer_store_dwordx4 v[{P}:{P+3}], v{V_ACTOFF}, {SWS}, s28 offen {m}")
        a(f"buffer_store_dwordx4 v[{P+4}:{P+7}], v{V_ACTOFF}, {SWS}, s27 offen {m}")
        if not half_sc1:
            a(f"buffer_store_dwordx2 v[{P+8}:{P+9}], v{V_ACTOFF}, {SWS}, s26 offen {m}")
    st_variants(a, emit, force_sc1=force, cond=cond)

def gelu(a, regs0, n, tmp0):
    for r in range(0, n, 2): a(pk('mul', tmp0+r, regs0+r, regs0+r))
    for r in range(0, n, 2): a(pk('fma', tmp0+r, tmp0+r, T0+4, T0+6))
    for r in range(0, n, 2): a(pk('mul', tmp0+r, tmp0+r, regs0+r))
    for r in range(n): a(f"v_exp_f32 v{tmp0+r}, v{tmp0+r}")
    for r in range(n): a(f"v_add_f32 v{tmp0+r}, 1.0, v{tmp0+r}")
    for r in range(n): a(f"v_rcp_f32 v{tmp0+r}, v{tmp0+r}")
    a("s_nop 0")
    for r in range(0, n, 2): a(pk('mul', regs0+r, regs0+r, tmp0+r))
def gelu_consts(a):
    a(f"v_mov_b32 v{T0+4}, {hex(f32bits(GC2))}"); a(f"v_mov_b32 v{T0+5}, v{T0+4}")
    a(f"v_mov_b32 v{T0+6}, {hex(f32bits(GC1))}"); a(f"v_mov_b32 v{T0+7}, v{T0+6}")

def setup(a, ws_off, nplanes, d0=0, d1=0, d2=0, d3=0):
    if d0 or d1:
        act_srd(a, ws_off - 32, nplanes); d0 += 32; d1 += 32; d2 += 32; d3 += 32
    else:
        act_srd(a, ws_off, nplanes)
    a(f"s_mov_b32 s{S_LO}, {d0 & 0xffffffff}")
    a(f"s_mov_b32 s{S_DA}, {(d1-d0) & 0xffffffff}")
    a(f"s_mov_b32 s{S_DB}, {(d2-d1) & 0xffffffff}")
    a(f"s_mov_b32 s{S_DC}, {(d3-d2) & 0xffffffff}")

def mflag(a, dst, p, mreg, stride=32):
    a(f"s_mul_i32 s{dst}, s{mreg}, {stride}"); a(f"s_add_u32 s{dst}, s{dst}, {flag_addr(p)}")

def gen_compute(a):
    S = T0
    set_actoff(a, M_)
    a(f"""
    v_lshlrev_b32 v{VM}, 4, v3
    v_add_u32 v{VM}, {L_MISC}, v{VM}
    v_lshlrev_b32 v{V_W0}, 4, v1
    v_add_u32 v{V_W1}, 51200, v{V_W0}
    s_lshr_b32 s26, s{S_J}, 1
    s_mul_i32 s26, s26, 5
    s_and_b32 s27, s{S_J}, 1
    s_lshl_b32 s28, s27, 1
    s_add_u32 s28, s28, s26
    s_mul_i32 s97, s28, {4*PLANE}
    s_add_u32 s26, s26, 4
    s_mul_i32 s96, s26, {4*PLANE}
    s_lshl_b32 s27, s27, 3
    s_add_u32 s96, s96, s27
    v_mov_b32 v{T0}, {L_MISC + 5248}
    ds_read_b128 v[{ACT}:{ACT+3}], v{T0}
    ds_read_b32 v{ACT+4}, v{T0} offset:16
    """)
    a("s_waitcnt vmcnt(0)")
    for t in range(5): unpack_bf16x4(a, X1 + 4*t, 208 + 2*t, 208 + 2*t + 1)
    a("s_waitcnt lgkmcnt(0)")
    for q in range(5): a(f"v_readfirstlane_b32 s{91+q}, v{ACT+q}")
    stamp(a, 1, off=True)
    a("s_waitcnt vmcnt(0)")
    a("s_barrier")
    mflag(a, 24, FL_O, M_); poll(a, 24, 8)
    setup(a, WS_O, 80)
    a(f"s_mov_b32 s{S_PH}, 0")
    a.label("L_g_entry")
    if FINE2: stamp(a, 8)
    issue_acts20(a)
    if FINE2: stamp(a, 9)
    gemm20(a)
    if FINE2: stamp(a, 14)
    a("s_barrier")
    a("s_nop 4")
    a(f"s_cmp_eq_u32 s{S_PH}, 1"); a("s_cbranch_scc1 L_ep_w1")
    a(f"s_cmp_eq_u32 s{S_PH}, 2"); a("s_cbranch_scc1 L_ep_w2")
    stamp(a, 3, off=True)
    V1, V2, V3 = 104, 124, 144
    vec_read(a, V1, 0); vec_read(a, V2, 320); vec_read(a, V3, 640)
    a("s_waitcnt lgkmcnt(10)")
    for r in range(0, 20, 2): a(pk('fma', X1+r, V1+r, ACC+r, X1+r))
    a("s_waitcnt lgkmcnt(5)")
    for r in range(0, 20, 2): a(pk('mul', ACC+r, X1+r, V2+r))
    pack_store_pi(a, ACC, WS_Z, force=not PREW, half_sc1=PREW)
    A = ACT + 12
    a("s_waitcnt lgkmcnt(0)")
    a(f"v_mov_b64 v[{A}:{A+1}], v[{X1}:{X1+1}]"); a(pk('mul', A+2, X1, X1))
    a(f"v_mov_b64 v[{A+4}:{A+5}], v[{ACC}:{ACC+1}]"); a(pk('mul', A+6, ACC, ACC)); a(pk('mul', A+8, ACC, V2)); a(pk('mul', A+10, ACC, V3))
    for r in range(2, 20, 2):
        a(pk('add', A, A, X1+r)); a(pk('fma', A+2, X1+r, X1+r, A+2)); a(pk('add', A+4, A+4, ACC+r))
        a(pk('fma', A+6, ACC+r, ACC+r, A+6)); a(pk('fma', A+8, ACC+r, V2+r, A+8)); a(pk('fma', A+10, ACC+r, V3+r, A+10))
    for i in range(6): a(f"v_add_f32 v{S+i}, v{A+2*i}, v{A+2*i+1}")
    reduce_g(a, [S+i for i in range(6)], [A+i for i in range(6)])
    a(f"""
    s_lshl_b32 s28, s{M_}, 12
    s_lshl_b32 s26, s{S_J}, 9
    s_add_u32 s28, s28, s26
    s_add_u32 s28, s28, {WS_ST1}
    v_lshlrev_b32 v{A+8}, 5, v2
    s_mov_b64 exec, 0xffff
    """)
    def emit(m):
        a(f"buffer_store_dwordx4 v[{S}:{S+3}], v{A+8}, {SWS}, s28 offen {m}")
        a(f"buffer_store_dwordx2 v[{S+4}:{S+5}], v{A+8}, {SWS}, s28 offen offset:16 {m}")
    st_variants(a, emit, force_sc1=not PREW)
    a("s_mov_b64 exec, -1")
    flag_off(a, 25, FL_Z, M_, S_J)
    signal(a, 25, tmp=A+10)
    stamp(a, 4, off=True)
    a("s_barrier")
    mflag(a, 24, FL_Z, M_); poll(a, 24, 8)
    stamp(a, 5, off=True)
    setup(a, WS_Z, 80)
    a(f"s_mov_b32 s{S_PH}, 1")
    a("s_branch L_g_entry")
    a.label("L_ep_w1")
    stamp(a, 6, off=True)
    a(f"""
    s_lshl_b32 s24, s{W_}, 10
    s_add_u32 s24, s24, {L_ST}
    v_lshl_add_u32 v{S+6}, v2, 5, s24
    ds_read_b128 v[{S}:{S+3}], v{S+6}
    ds_read_b64 v[{S+4}:{S+5}], v{S+6} offset:16
    """)
    vec_read(a, V1, 1280); vec_read(a, V2, 1600); vec_read(a, V3, 1920)
    a("s_waitcnt lgkmcnt(15)")
    B = ACT + 16
    for k, r in enumerate((S+5, S+3, S+4, S+2, S, S+1)):
        a(f"v_mov_b32 v{B+2*k}, v{r}"); a(f"v_mov_b32 v{B+2*k+1}, v{r}")
    a("s_waitcnt lgkmcnt(0)")
    for r in range(0, 20, 2): a(pk('mul', V2+r, V2+r, B))
    for r in range(0, 20, 2): a(pk('fma', V2+r, V3+r, B+2, V2+r))
    for r in range(0, 20, 2): a(pk('fma', V2+r, V1+r, B+4, V2+r))
    for r in range(0, 20, 2): a(pk('fma', ACC+r, ACC+r, B+6, V2+r))
    if FINE: stamp(a, 3)
    gelu_consts(a)
    gelu(a, ACC, 20, V1)
    if FINE: stamp(a, 4)
    pack_store_pi(a, ACC, BUF_G)
    flag_off(a, 25, FL_G, M_, S_J)
    vec_read(a, V1, 320); vec_read(a, V2, 640)
    a("s_waitcnt lgkmcnt(0)")
    for r in range(0, 20, 2): a(f"v_pk_add_f32 v[{Y1+r}:{Y1+r+1}], v[{X1+r}:{X1+r+1}], v[{B+8}:{B+9}] neg_lo:[0,1] neg_hi:[0,1]")
    for r in range(0, 20, 2): a(pk('mul', V1+r, V1+r, B+10))
    for r in range(0, 20, 2): a(pk('fma', Y1+r, Y1+r, V1+r, V2+r))
    if FINE: stamp(a, 5)
    signal(a, 25)
    if FINE: stamp(a, 6)
    a("s_barrier")
    a(f"s_and_b32 s90, s{M_}, 15")
    a(f"s_cmp_eq_u32 s90, 0"); a("s_cbranch_scc1 L_e_top")
    a(f"s_cmp_eq_u32 s90, 15"); a("s_cbranch_scc0 L_e_mid")
    a("s_mov_b32 exec_lo, 0xc000c000"); a("s_mov_b32 exec_hi, 0xc000c000"); a("s_mov_b32 s29, 1"); a("s_branch L_e_st")
    a.label("L_e_top")
    a("s_mov_b32 exec_lo, 0x00030003"); a("s_mov_b32 exec_hi, 0x00030003"); a("s_mov_b32 s29, 0")
    a.label("L_e_st")
    P = ACT
    a(f"buffer_store_dwordx4 v[{P}:{P+3}], v{V_ACTOFF}, {SWS}, s28 offen sc1")
    a(f"buffer_store_dwordx4 v[{P+4}:{P+7}], v{V_ACTOFF}, {SWS}, s27 offen sc1")
    a(f"buffer_store_dwordx2 v[{P+8}:{P+9}], v{V_ACTOFF}, {SWS}, s26 offen sc1")
    a(f"""
    s_mov_b64 exec, -1
    s_lshl_b32 s24, s{S_X}, 1
    s_add_u32 s24, s24, s29
    s_lshl_b32 s24, s24, 3
    s_add_u32 s24, s24, s{S_J}
    s_lshl_b32 s24, s24, 7
    s_add_u32 s24, s24, {WS_FLE}
    v_mov_b32 v{T0}, s{FLAGV}
    v_mov_b32 v{T0+1}, 0
    s_waitcnt vmcnt(0)
    s_mov_b64 exec, 1
    buffer_store_dword v{T0}, v{T0+1}, {SWS}, s24 offen sc1
    s_mov_b64 exec, -1
    """)
    a(f"s_mul_i32 s24, s{M_}, 32")
    a(f"s_add_u32 s24, s24, {flag_addr(FL_G)}")
    a("s_cmp_eq_u32 s90, 15"); a("s_cbranch_scc0 L_e_p1")
    a("s_sub_u32 s24, s24, 32")
    a.label("L_e_p1")
    poll(a, 24, 16)
    a(f"s_cmp_eq_u32 s{M_}, 0"); a("s_cbranch_scc1 L_w1_go")
    a(f"s_cmp_eq_u32 s{M_}, 127"); a("s_cbranch_scc1 L_w1_go")
    a(f"s_lshl_b32 s24, s{S_X}, 1")
    a("s_sub_u32 s25, s24, 1"); a("s_add_u32 s24, s24, 2")
    a("s_cmp_eq_u32 s90, 0"); a("s_cselect_b32 s24, s25, s24")
    a("s_lshl_b32 s24, s24, 10"); a(f"s_add_u32 s24, s24, {WS_FLE}")
    poll(a, 24, 8, stride_sh=7)
    a("s_branch L_w1_go")
    a.label("L_e_mid")
    a(f"s_mul_i32 s24, s{M_}, 32")
    a(f"s_add_u32 s24, s24, {flag_addr(FL_G) - 32}")
    poll(a, 24, 24)
    a.label("L_w1_go")
    stamp(a, 7, off=True)
    setup(a, BUF_G, 80, -16, 16, -32, 32)
    a(f"s_mov_b32 s{S_PH}, 2")
    a("s_branch L_g_entry")
    a.label("L_ep_w2")
    stamp(a, 8, off=True)
    for r in range(0, 20, 2): a(pk('add', Y1+r, Y1+r, ACC+r))
    pack_store_pi(a, Y1, BUF_Y)
    A = ACT + 12
    a(f"v_mov_b64 v[{A}:{A+1}], v[{Y1}:{Y1+1}]"); a(pk('mul', A+2, Y1, Y1))
    for r in range(2, 20, 2):
        a(pk('add', A, A, Y1+r)); a(pk('fma', A+2, Y1+r, Y1+r, A+2))
    a(f"v_add_f32 v{S}, v{A}, v{A+1}"); a(f"v_add_f32 v{S+1}, v{A+2}, v{A+3}")
    reduce_g(a, [S, S+1], [A, A+1])
    a(f"""
    s_lshl_b32 s28, s{M_}, 10
    s_lshl_b32 s26, s{S_J}, 7
    s_add_u32 s28, s28, s26
    s_add_u32 s28, s28, {WS_ST2}
    v_lshlrev_b32 v{A+2}, 3, v2
    s_mov_b64 exec, 0xffff
    """)
    st_variants(a, lambda m: a(f"buffer_store_dwordx2 v[{S}:{S+1}], v{A+2}, {SWS}, s28 offen {m}"))
    a("s_mov_b64 exec, -1")
    flag_off(a, 25, FL_Y, M_, S_J)
    signal(a, 25, tmp=A+4)
    gen_w3(a)
    gen_w4(a)

def gen_w3(a):
    M3, JJ = 89, 90
    S = T0
    a(f"""
    s_lshl_b32 s{M3}, s{S_X}, 4
    s_lshr_b32 s24, s{S_T}, 4
    s_lshl_b32 s24, s24, 3
    s_add_u32 s{M3}, s{M3}, s24
    s_lshl_b32 s24, s{W_}, 1
    s_add_u32 s{M3}, s{M3}, s24
    s_and_b32 s{JJ}, s{S_T}, 15
    """)
    a("s_barrier")
    mflag(a, 24, FL_Y, M3); poll(a, 24, 16)
    stamp(a, 9, off=True)
    set_actoff(a, M3)
    act_srd(a, BUF_Y, 80)
    a(f"s_mov_b32 s{S_LO}, 0")
    A3 = 164
    NW3 = 5
    def aload(sl):
        act_load(a, A3 + 8*sl); act_load(a, A3 + 8*sl + 4, 256); lo_step(a)
    for k in range(NW3): aload(k)
    for r in range(0, 56, 2): a(f"v_mov_b64 v[{ACC+r}:{ACC+r+1}], 0")
    def wread7(buf, va, q):
        for tt in range(7): a(f"ds_read_b128 v[{WB3[buf]+4*tt}:{WB3[buf]+4*tt+3}], v{va} offset:{q*7168 + 1024*tt}")
    a(f"v_lshlrev_b32 v{V_W0}, 4, v1")
    a(f"v_add_u32 v{V_W1}, {5*7168}, v{V_W0}")
    wread7(0, V_W0, 0)
    a(f"s_mov_b32 s{S_CCH}, 0")
    a.label("L_w3_loop")
    for k in range(10):
        buf = k & 1
        a(f"s_waitcnt vmcnt({2*NW3-2}) lgkmcnt(0)")
        if k == 9:
            a(f"v_add_u32 v{V_W0}, {10*7168}, v{V_W0}")
            a(f"v_add_u32 v{V_W1}, {10*7168}, v{V_W1}")
            wread7(1 - buf, V_W0, 0)
        elif k + 1 < 5: wread7(1 - buf, V_W0, k + 1)
        else: wread7(1 - buf, V_W1, k + 1 - 5)
        for tt in range(7):
            a(mf16(ACC + 4*tt, WB3[buf] + 4*tt, A3 + 8*k))
            a(mf16(ACC + 28 + 4*tt, WB3[buf] + 4*tt, A3 + 8*k + 4))
            if tt == 1: aload((k + NW3) % 10)
    a(f"s_add_u32 s{S_CCH}, s{S_CCH}, 1")
    a(f"s_cmp_lt_u32 s{S_CCH}, 2")
    a("s_cbranch_scc1 L_w3_loop")
    a("s_waitcnt vmcnt(0) lgkmcnt(0)")
    a("s_barrier")
    stamp(a, 10, off=True)
    a(f"""
    s_lshl_b32 s24, s{W_}, 10
    s_add_u32 s24, s24, {L_ST}
    v_lshl_add_u32 v{S+6}, v2, 5, s24
    ds_read_b64 v[{S}:{S+1}], v{S+6}
    ds_read_b64 v[{S+2}:{S+3}], v{S+6} offset:512
    """)
    CS = WB3[1]
    vec_read(a, CS, 2240, 7)
    B = A3 + 16
    a("s_waitcnt lgkmcnt(7)")
    for k in (0, 2):
        a(f"v_sub_f32 v{B+2*k}, 0, v{S+k}"); a(f"v_mov_b32 v{B+2*k+2}, v{S+k+1}")
        a(f"v_mov_b32 v{B+2*k+1}, v{B+2*k}"); a(f"v_mov_b32 v{B+2*k+3}, v{B+2*k+2}")
    gelu_consts(a)
    a("s_waitcnt lgkmcnt(0)")
    for rt in range(2):
        R0 = ACC + 28*rt
        for r in range(0, 28, 2): a(pk('fma', R0+r, CS+r, B+4*rt, R0+r))
        for r in range(0, 28, 2): a(pk('mul', R0+r, R0+r, B+4*rt+2))
        gelu(a, R0, 28, WB3[0])
    P = A3 + 32
    for rt in range(2):
        for tt in range(7):
            a(f"v_cvt_pk_bf16_f32 v{P+16*rt+2*tt}, v{ACC+28*rt+4*tt}, v{ACC+28*rt+4*tt+1}")
            a(f"v_cvt_pk_bf16_f32 v{P+16*rt+2*tt+1}, v{ACC+28*rt+4*tt+2}, v{ACC+28*rt+4*tt+3}")
    a(f"""
    s_mul_i32 s26, s{JJ}, {3*4*PLANE}
    s_add_u32 s26, s26, {WS_U}
    s_add_u32 s27, s26, {4*PLANE}
    s_add_u32 s28, s26, {8*PLANE}
    s_lshr_b32 s24, s{JJ}, 1
    s_add_u32 s24, s24, 48
    s_mul_i32 s24, s24, {4*PLANE}
    s_and_b32 s29, s{JJ}, 1
    s_lshl_b32 s29, s29, 3
    s_add_u32 s24, s24, s29
    s_add_u32 s24, s24, {WS_U}
    """)
    lab = a.new_label('L_u6')
    a(f"s_cmp_ge_u32 s{JJ}, 12"); a(f"s_cbranch_scc1 {lab}")
    for rt in range(2):
        a(f"buffer_store_dwordx2 v[{P+16*rt+12}:{P+16*rt+13}], v{V_ACTOFF}, {SWS}, s24 offen offset:{256*rt} sc1")
    a.label(lab)
    def emit(m):
        for rt in range(2):
            for p, sr in enumerate((26, 27, 28)):
                a(f"buffer_store_dwordx4 v[{P+16*rt+4*p}:{P+16*rt+4*p+3}], v{V_ACTOFF}, {SWS}, s{sr} offen offset:{256*rt} {m}")
    st_variants(a, emit, force_sc1=not PREW)
    a(f"s_lshr_b32 s24, s{M3}, 1"); a(f"s_mul_i32 s25, s24, 64"); a(f"s_lshl_b32 s29, s{JJ}, 2"); a("s_add_u32 s25, s25, s29"); a(f"s_add_u32 s25, s25, {flag_addr(FL_U)}")
    signal(a, 25)

def gen_w4(a):
    stamp(a, 11, off=True)
    a("s_barrier")
    a(f"s_lshr_b32 s24, s{M_}, 1"); a(f"s_mul_i32 s24, s24, 64"); a(f"s_add_u32 s24, s24, {flag_addr(FL_U)}"); poll(a, 24, 16)
    stamp(a, 12, off=True)
    set_actoff(a, M_)
    act_srd(a, WS_U, 216)
    a(f"s_mov_b32 s{S_LO}, 0")
    NW = 18
    NF = int(os.environ.get('NF4', '10'))
    for k in range(NF): act_load(a, ACT + 4*k); lo_step(a)
    for r in range(0, 20, 2): a(f"v_mov_b64 v[{ACC+r}:{ACC+r+1}], 0")
    a(f"v_lshlrev_b32 v{V_W0}, 4, v1")
    a(f"s_mov_b32 s{S_CCH}, 0")
    a(f"s_mov_b32 s85, 0")
    def wread(t, q):
        b = WB[t % 3]
        for tt in range(5): a(f"ds_read_b128 v[{b+4*tt}:{b+4*tt+3}], v{V_W0} offset:{q*5120 + 1024*tt}")
    def advance():
        a(f"s_add_u32 s{S_CCH}, s{S_CCH}, {SLOT4}")
        a(f"s_cmp_eq_u32 s{S_CCH}, {4*SLOT4}")
        a(f"s_cselect_b32 s{S_CCH}, 0, s{S_CCH}")
        a(f"v_lshl_add_u32 v{V_W0}, v1, 4, s{S_CCH}")
    wread(0, 0); wread(1, 1)
    a.label("L_w4_loop")
    for t in range(NW):
        q = t % 6
        if q == 4:
            a(f"s_waitcnt vmcnt({NF-1}) lgkmcnt(0)")
            lab = a.new_label('L_w4_nb')
            if t == NW - 2:
                a("s_cmp_eq_u32 s85, 2"); a(f"s_cbranch_scc1 {lab}")
            a("s_barrier")
            advance()
            wread(t + 2, 0)
            if t == NW - 2: a.label(lab)
        elif q == 5:
            a(f"s_waitcnt vmcnt({NF-1}) lgkmcnt(5)")
            wread(t + 2, 1)
        else:
            a(f"s_waitcnt vmcnt({NF-1}) lgkmcnt(5)")
            wread(t + 2, q + 2)
        for tt in range(5): a(mf16(ACC + 4*tt, WB[t % 3] + 4*tt, ACT + 4*t))
        if not os.environ.get('W4NOACT'): act_load(a, ACT + 4*((t + NF) % NW))
        lo_step(a)
    a("s_add_u32 s85, s85, 1")
    a("s_cmp_lt_u32 s85, 3")
    a("s_cbranch_scc1 L_w4_loop")
    a("s_waitcnt vmcnt(0) lgkmcnt(0)")
    stamp(a, 13, off=True)
    V1 = 104
    vec_read(a, V1, 960)
    for r in range(0, 20, 2): a(pk('add', ACC+r, ACC+r, Y1+r))
    a("s_waitcnt lgkmcnt(0)")
    for r in range(0, 20, 2): a(pk('fma', ACC+r, ACC+r, V1+r, X1+r))
    for t in range(5):
        a(f"v_cvt_pk_bf16_f32 v{ACT+2*t}, v{ACC+4*t}, v{ACC+4*t+1}")
        a(f"v_cvt_pk_bf16_f32 v{ACT+2*t+1}, v{ACC+4*t+2}, v{ACC+4*t+3}")
    srd(a, SRD_B, P_OUT)
    a(f"s_mul_i32 s24, s{S_J}, 160")
    for t in range(5):
        a(f"buffer_store_dwordx2 v[{ACT+2*t}:{ACT+2*t+1}], v{V_XOFF}, s[{SRD_B}:{SRD_B+3}], s24 offen offset:{32*t}")
    if common.STAMP:
        a("s_waitcnt vmcnt(0)")
        stamp(a, 14, off=True)
        stamp_dump(a)

def dma_run(a, n_reg_or_imm, sg, sl, vreg):
    lp = a.new_label('L_dr')
    a(f"s_mov_b32 s24, {n_reg_or_imm}")
    a.label(lp)
    a(f"s_mov_b32 m0, s{sl}")
    a(f"s_add_u32 s{sl}, s{sl}, 1024")
    a(f"buffer_load_dwordx4 v{vreg}, {SWS}, s{sg} offen {WNT} lds")
    a(f"s_add_u32 s{sg}, s{sg}, 1024")
    a("s_sub_u32 s24, s24, 1")
    a("s_cmp_lg_u32 s24, 0")
    a(f"s_cbranch_scc1 {lp}")

LVA = 200
def loader_stream(a, ws_base, grp_reg, grp_bytes, per_wave):
    a(f"s_mul_i32 s88, s{grp_reg}, {grp_bytes}")
    a(f"s_add_u32 s88, s88, {ws_base}")
    a(f"s_mul_i32 s89, s{W_}, {per_wave*1024}")
    a(f"s_add_u32 s88, s88, s89")
    dma_run(a, per_wave, 88, 89, LVA)

TOUCH = os.environ.get('TOUCH', '0') == '1'
def touch(a, ws_base, grp_reg, grp_bytes, part_reg, part_bytes, ninstr, dst=232):
    if not TOUCH: return 0
    a(f"s_mul_i32 s24, s{grp_reg}, {grp_bytes}")
    a(f"s_mul_i32 s25, s{part_reg}, {part_bytes}")
    a("s_add_u32 s24, s24, s25")
    a(f"s_mul_i32 s25, s{W_}, {part_bytes // 4}")
    a("s_add_u32 s24, s24, s25")
    a(f"s_add_u32 s24, s24, {ws_base}")
    a(f"v_lshlrev_b32 v{dst+7}, 7, v1")
    for q in range(ninstr):
        a(f"buffer_load_dword v{dst+q}, v{dst+7}, {SWS}, s24 offen")
        if q + 1 < ninstr: a("s_add_u32 s24, s24, 8192")
    return ninstr

WARM = os.environ.get('WARM', '0') == '1'
def warm_planes(a, ws_off, planes_expr, nplanes, mreg, nrt, dst, extra_sreg=None):
    if not WARM: return
    per = 2 * nrt
    sh = {2: 1, 4: 2}[per]
    a(f"v_lshrrev_b32 v{dst+1}, {sh}, v1")
    a(f"v_and_b32 v{dst+2}, {per-1}, v1")
    planes_expr(a, dst + 1)
    a(f"v_mul_u32_u24 v{dst+1}, {PLANE}, v{dst+1}")
    a(f"v_lshl_add_u32 v{dst+1}, v{dst+2}, 7, v{dst+1}")
    a(f"s_lshl_b32 s24, s{mreg}, 8")
    a(f"s_add_u32 s24, s24, {ws_off + GUARD*16}")
    n = nplanes * per
    if n >= 64: pass
    elif n > 32: a("s_mov_b32 exec_hi, " + hex((1 << (n - 32)) - 1))
    else: a("s_mov_b64 exec, " + hex((1 << n) - 1))
    a(f"buffer_load_dword v{dst}, v{dst+1}, {SWS}, s24 offen")
    a("s_mov_b64 exec, -1")

def planes_pi(a, v):
    a(f"s_lshr_b32 s25, s{S_J}, 1"); a("s_mul_i32 s25, s25, 20")
    a(f"s_and_b32 s26, s{S_J}, 1"); a("s_lshl_b32 s26, s26, 3"); a("s_add_u32 s26, s26, s25")
    a("s_add_u32 s25, s25, 8")
    a(f"v_cmp_gt_u32 vcc, 8, v{v}")
    a(f"v_mov_b32 v{v+2+1}, s25"); a(f"v_mov_b32 v{v+2+2}, s26")
    a(f"v_cndmask_b32 v{v+3}, v{v+3}, v{v+4}, vcc")
    a(f"v_add_u32 v{v}, v{v}, v{v+3}")
def planes_o(a, v):
    a(f"s_mul_i32 s25, s{S_J}, 10"); a(f"v_add_u32 v{v}, s25, v{v}")
def planes_u(jjreg):
    def f(a, v):
        a(f"s_mul_i32 s26, s{jjreg}, 12")
        a(f"s_lshr_b32 s25, s{jjreg}, 1"); a("s_lshl_b32 s25, s25, 2"); a("s_add_u32 s25, s25, 180")
        a(f"v_cmp_gt_u32 vcc, 12, v{v}")
        a(f"v_mov_b32 v{v+3}, s25"); a(f"v_mov_b32 v{v+4}, s26")
        a(f"v_cndmask_b32 v{v+3}, v{v+3}, v{v+4}, vcc")
        a(f"v_add_u32 v{v}, v{v}, v{v+3}")
    return f

def loader_stats1(a):
    S = T0
    mflag(a, 24, FL_Z, M_); poll(a, 24, 8)
    a(f"""
    s_lshl_b32 s24, s{M_}, 12
    s_add_u32 s24, s24, {WS_ST1}
    v_lshlrev_b32 v{S}, 5, v2
    v_lshl_add_u32 v{S}, v3, 10, v{S}
    buffer_load_dwordx4 v[{ACT}:{ACT+3}], v{S}, {SWS}, s24 offen sc1
    buffer_load_dwordx2 v[{ACT+4}:{ACT+5}], v{S}, {SWS}, s24 offen offset:16 sc1
    buffer_load_dwordx4 v[{ACT+8}:{ACT+11}], v{S}, {SWS}, s24 offen offset:512 sc1
    buffer_load_dwordx2 v[{ACT+12}:{ACT+13}], v{S}, {SWS}, s24 offen offset:528 sc1
    s_waitcnt vmcnt(0)
    """)
    for i in range(6): a(f"v_add_f32 v{S+i}, v{ACT+i}, v{ACT+8+i}")
    reduce_g(a, [S+i for i in range(6)], [ACT+i for i in range(6)])
    C1.gen_stats_math.__globals__['ACT'] = ACT
    C1.gen_stats_math(a, S)
    a(f"""
    s_lshl_b32 s24, s{W_}, 10
    s_add_u32 s24, s24, {L_ST}
    v_lshl_add_u32 v{S+6}, v2, 5, s24
    s_mov_b64 exec, 0xffff
    ds_write_b128 v{S+6}, v[{S}:{S+3}]
    ds_write_b64 v{S+6}, v[{S+4}:{S+5}] offset:16
    s_mov_b64 exec, -1
    s_waitcnt lgkmcnt(0)
    """)

def loader_stats2(a):
    S = T0; M3 = 92
    a(f"""
    s_lshl_b32 s{M3}, s{S_X}, 4
    s_lshr_b32 s24, s{S_T}, 4
    s_lshl_b32 s24, s24, 3
    s_add_u32 s{M3}, s{M3}, s24
    s_lshl_b32 s24, s{W_}, 1
    s_add_u32 s{M3}, s{M3}, s24
    """)
    mflag(a, 24, FL_Y, M3); poll(a, 24, 16)
    a(f"""
    s_lshl_b32 s24, s{M3}, 10
    s_add_u32 s24, s24, {WS_ST2}
    v_lshlrev_b32 v{S}, 3, v2
    v_lshl_add_u32 v{S}, v3, 8, v{S}
    buffer_load_dwordx2 v[{ACT}:{ACT+1}], v{S}, {SWS}, s24 offen sc1
    buffer_load_dwordx2 v[{ACT+2}:{ACT+3}], v{S}, {SWS}, s24 offen offset:128 sc1
    buffer_load_dwordx2 v[{ACT+4}:{ACT+5}], v{S}, {SWS}, s24 offen offset:1024 sc1
    buffer_load_dwordx2 v[{ACT+6}:{ACT+7}], v{S}, {SWS}, s24 offen offset:1152 sc1
    s_waitcnt vmcnt(0)
    v_add_f32 v{S}, v{ACT}, v{ACT+2}
    v_add_f32 v{S+1}, v{ACT+1}, v{ACT+3}
    v_add_f32 v{S+2}, v{ACT+4}, v{ACT+6}
    v_add_f32 v{S+3}, v{ACT+5}, v{ACT+7}
    """)
    reduce_g(a, [S, S+1, S+2, S+3], [ACT+8, ACT+9, ACT+10, ACT+11])
    i640 = '0x3acccccd'
    for k in (0, 2):
        a(f"v_mul_f32 v{S+k}, {i640}, v{S+k}")
        a(f"v_mul_f32 v{S+k+1}, {i640}, v{S+k+1}")
        a(f"v_fma_f32 v{S+k+1}, -v{S+k}, v{S+k}, v{S+k+1}")
        a(f"v_add_f32 v{S+k+1}, 0x3727c5ac, v{S+k+1}")
        a(f"v_rsq_f32 v{S+k+1}, v{S+k+1}")
    a(f"""
    s_lshl_b32 s24, s{W_}, 10
    s_add_u32 s24, s24, {L_ST}
    v_lshl_add_u32 v{S+6}, v2, 5, s24
    s_mov_b64 exec, 0xffff
    ds_write_b64 v{S+6}, v[{S}:{S+1}]
    ds_write_b64 v{S+6}, v[{S+2}:{S+3}] offset:512
    s_mov_b64 exec, -1
    s_waitcnt lgkmcnt(0)
    """)

def gen_loader(a):
    a(f"v_lshlrev_b32 v{LVA}, 4, v1")
    a("s_waitcnt vmcnt(0)"); a("s_barrier")
    a(f"v_mov_b32 v{T0}, {L_MISC + 5248}")
    a(f"ds_read_b128 v[{ACT}:{ACT+3}], v{T0}")
    a(f"ds_read_b32 v{ACT+4}, v{T0} offset:16")
    a("s_waitcnt lgkmcnt(0)")
    for q in range(5): a(f"v_readfirstlane_b32 s{91+q}, v{ACT+q}")
    a("s_barrier")
    loader_stream(a, WS_W1, S_J, 102400, 25)
    a(f"s_and_b32 s90, s{S_T}, 15"); a(f"s_lshr_b32 s93, s{S_T}, 4")
    n = touch(a, WS_W3, 90, 143360, 93, 71680, 3)
    a(f"s_waitcnt vmcnt({n})"); a("s_barrier")
    loader_stats1(a)
    a("s_barrier")
    loader_stream(a, WS_W2, S_J, 102400, 25)
    n = touch(a, WS_W4, S_J, 276480, S_B, 69120, 3)
    a(f"s_waitcnt vmcnt({n})"); a("s_barrier")
    a("s_barrier")
    a(f"s_and_b32 s90, s{S_T}, 15")
    loader_stream(a, WS_W3, 90, 143360, 35)
    a("s_waitcnt vmcnt(0)"); a("s_barrier")
    loader_stats2(a)
    a("s_barrier")
    a(f"""
    s_mul_i32 s88, s{S_J}, 276480
    s_add_u32 s88, s88, {WS_W4}
    s_lshl_b32 s89, s{W_}, 13
    s_add_u32 s88, s88, s89
    s_mov_b32 s90, 0
    s_mov_b32 s91, 0
    v_mov_b32 v201, 0x7ffffff0
    s_cmp_eq_u32 s{W_}, 3
    s_cselect_b64 vcc, -1, 0
    s_nop 0
    v_cndmask_b32 v201, v{LVA}, v201, vcc
    """)
    def issue():
        a(f"s_add_u32 s24, s91, s89")
        a(f"s_mov_b32 m0, s24")
        a(f"s_add_u32 s25, s88, 4096")
        for q in range(4):
            if not os.environ.get('W4NOW'): a(f"buffer_load_dwordx4 v{LVA}, {SWS}, s88 offen offset:{1024*q} {WNT} lds")
        a(f"s_add_u32 m0, s24, 4096")
        a(f"s_add_u32 s88, s88, {30*1024}")
        for q in range(2):
            if not os.environ.get('W4NOW'): a(f"buffer_load_dwordx4 v{LVA}, {SWS}, s25 offen offset:{1024*q} {WNT} lds")
        a(f"s_add_u32 s26, s24, {4096}")
        a(f"s_cmp_eq_u32 s{W_}, 3")
        a(f"s_cselect_b32 s26, {L_MISC + 12288 - 2048}, s26")
        a(f"s_mov_b32 m0, s26")
        a("s_nop 0")
        for q in range(2, 4):
            if not os.environ.get('W4NOW'): a(f"buffer_load_dwordx4 v201, {SWS}, s25 offen offset:{1024*q} {WNT} lds")
        a(f"s_add_u32 s91, s91, {SLOT4}")
        a(f"s_cmp_eq_u32 s91, {4*SLOT4}")
        a(f"s_cselect_b32 s91, 0, s91")
        a("s_add_u32 s90, s90, 1")
    a.label("L_l4_pro")
    issue()
    a("s_cmp_lt_u32 s90, 4"); a("s_cbranch_scc1 L_l4_pro")
    a("s_waitcnt vmcnt(0)"); a("s_barrier")
    a("s_mov_b32 s92, 0")
    a.label("L_l4_loop")
    def dyn(reg):
        if not common.STAMP: return
        a("s_memrealtime s[98:99]"); a("s_waitcnt lgkmcnt(0)")
        a("v_mov_b32 v249, s98"); a("v_cmp_eq_u32 vcc, s92, v1"); a("s_nop 1"); a(f"v_cndmask_b32 v{reg}, v{reg}, v249, vcc")
    dyn(250)
    a("s_waitcnt vmcnt(16)")
    dyn(251)
    a("s_barrier")
    dyn(252)
    a("s_cmp_ge_u32 s90, 9"); a("s_cbranch_scc1 L_l4_dum")
    issue()
    a("s_branch L_l4_nx")
    a.label("L_l4_dum")
    a("s_waitcnt vmcnt(0)")
    a.label("L_l4_nx")
    a("s_add_u32 s92, s92, 1")
    a("s_cmp_lt_u32 s92, 8"); a("s_cbranch_scc1 L_l4_loop")
    a("s_waitcnt vmcnt(0)")
    if common.STAMP:
        a(f"""
        s_lshl_b32 s24, s2, 3
        s_add_u32 s24, s24, s{S_WAVE}
        s_mul_i32 s24, s24, 96
        s_add_u32 s24, s24, {WS_DBG1 + 0x60000}
        v_lshlrev_b32 v249, 2, v1
        s_mov_b64 exec, 0xff
        buffer_store_dword v250, v249, {SWS}, s24 offen
        buffer_store_dword v251, v249, {SWS}, s24 offen offset:32
        buffer_store_dword v252, v249, {SWS}, s24 offen offset:64
        s_mov_b64 exec, -1
        """)
```

```python
from common import *

def gen_front0(a, name='front0_kernel'):
    header(a, name)
    END = 'L_f0_end'
    prologue(a, end_label=END)
    srd(a, SRD_A, P_C)
    srd(a, SRD_B, P_WMOD)
    a(f"""
    s_mul_i32 s24, s{S_X}, 20
    s_add_u32 s24, s24, s{S_T}
    s_mul_i32 s26, s{S_X}, 12
    s_add_u32 s26, s26, s{S_T}
    s_add_u32 s26, s26, 140
    s_cmp_lt_u32 s{S_T}, 20
    s_cselect_b32 s24, s24, s26
    s_lshl_b32 s25, s{S_X}, 5
    s_add_u32 s25, s25, s{S_T}
    s_add_u32 s25, s25, 256
    s_lshl_b32 s26, s24, 4
    s_lshl_b32 s27, s25, 4
    v_lshlrev_b32 v1, 1, v0
    buffer_load_ushort v2, v1, s[{SRD_A}:{SRD_A+3}], 0 offen
    buffer_load_ushort v3, v1, s[{SRD_A}:{SRD_A+3}], 0 offen offset:1024
    v_mul_u32_u24 v4, 7680, v0
    v_add_u32 v5, {512*7680}, v4
    buffer_load_dwordx4 v[8:11], v4, s[{SRD_B}:{SRD_B+3}], s26 offen
    buffer_load_dwordx4 v[12:15], v5, s[{SRD_B}:{SRD_B+3}], s26 offen
    """)
    a(f"""
    s_min_u32 s27, s27, {479*16}
    buffer_load_dwordx4 v[16:19], v4, s[{SRD_B}:{SRD_B+3}], s27 offen
    buffer_load_dwordx4 v[20:23], v5, s[{SRD_B}:{SRD_B+3}], s27 offen
    s_waitcnt vmcnt(4)
    """)
    for r in (2, 3):
        a(f"v_lshlrev_b32 v{r}, 16, v{r}")
    for r, t in ((2, 6), (3, 7)):
        a(f"v_mul_f32 v{t}, 0xbfb8aa3b, v{r}")
    for t in (6, 7):
        a(f"v_exp_f32 v{t}, v{t}")
    a("s_nop 0")
    for t in (6, 7):
        a(f"v_add_f32 v{t}, 1.0, v{t}")
    for t in (6, 7):
        a(f"v_rcp_f32 v{t}, v{t}")
    a("s_nop 0")
    for r, t in ((2, 6), (3, 7)):
        a(f"v_mul_f32 v{r}, v{r}, v{t}")
    a("v_cvt_pk_bf16_f32 v6, v2, v3")
    a("v_lshlrev_b32 v2, 16, v6")
    a("v_and_b32 v3, 0xffff0000, v6")
    a("s_waitcnt vmcnt(0)")
    for jb, (r1, r2, acc) in enumerate(((8, 12, 24), (16, 20, 32))):
        for e in range(4):
            a(f"v_lshlrev_b32 v40, 16, v{r1+e}")
            a(f"v_and_b32 v41, 0xffff0000, v{r1+e}")
            a(f"v_mul_f32 v{acc+2*e}, v2, v40")
            a(f"v_mul_f32 v{acc+2*e+1}, v2, v41")
            a(f"v_lshlrev_b32 v40, 16, v{r2+e}")
            a(f"v_and_b32 v41, 0xffff0000, v{r2+e}")
            a(f"v_fmac_f32 v{acc+2*e}, v3, v40")
            a(f"v_fmac_f32 v{acc+2*e+1}, v3, v41")
    wave_reduce_add_dpp(a, list(range(24, 40)))
    a(f"""
    v_and_b32 v1, 63, v0
    s_lshl_b32 s28, s{S_WAVE}, 6
    v_mov_b32 v6, s28
    v_cmp_eq_u32 vcc, 63, v1
    s_and_saveexec_b64 s[30:31], vcc
    ds_write_b128 v6, v[24:27]
    ds_write_b128 v6, v[28:31] offset:16
    ds_write_b128 v6, v[32:35] offset:32
    ds_write_b128 v6, v[36:39] offset:48
    s_mov_b64 exec, s[30:31]
    s_waitcnt lgkmcnt(0)
    s_barrier
    v_cmp_gt_u32 vcc, 16, v0
    s_and_saveexec_b64 s[30:31], vcc
    s_cbranch_execz L_f0_m1
    v_lshlrev_b32 v6, 2, v0
    """)
    for w in range(8):
        a(f"ds_read_b32 v{24+w}, v6 offset:{64*w}")
    a("s_waitcnt lgkmcnt(0)")
    for w in range(1, 8):
        a(f"v_add_f32 v24, v24, v{24+w}")
    a(f"""
    v_cvt_pk_bf16_f32 v24, v24, v24
    v_lshlrev_b32 v24, 16, v24
    v_and_b32 v7, 7, v0
    v_lshlrev_b32 v7, 2, v7
    s_lshl_b32 s26, s24, 5
    s_lshl_b32 s27, s25, 5
    v_mov_b32 v8, s26
    v_mov_b32 v9, s27
    v_cmp_gt_u32 vcc, 8, v0
    s_nop 1
    v_cndmask_b32 v8, v9, v8, vcc
    v_add_u32 v7, v7, v8
    v_cmp_gt_u32 vcc, {480*32}, v7
    s_and_b64 exec, exec, vcc
    s_cbranch_execz L_f0_m1
    buffer_store_dword v24, v7, s[{SRD_WS}:{SRD_WS+3}], 0 offen offset:{WS_MOD}
    """)
    a.label('L_f0_m1')
    a("s_mov_b64 exec, s[30:31]")
    a(f"""
    v_mov_b32 v8, 0
    v_mov_b32 v9, 0
    v_mov_b32 v10, 0
    v_mov_b32 v11, 0
    s_lshl_b32 s26, s2, 8
    s_add_u32 s26, s26, {WS_FLAGS}
    v_lshlrev_b32 v6, 4, v0
    v_cmp_gt_u32 vcc, 16, v0
    s_and_saveexec_b64 s[30:31], vcc
    s_cbranch_execz L_f0_z1
    buffer_store_dwordx4 v[8:11], v6, s[{SRD_WS}:{SRD_WS+3}], s26 offen
    """)
    a.label('L_f0_z1')
    a("s_mov_b64 exec, s[30:31]")
    a(f"""
    s_cmp_ge_u32 s2, 80
    s_cbranch_scc1 L_f0_z2
    s_mul_i32 s26, s2, {PLANE}
    s_add_u32 s26, s26, {WS_G}
    v_and_b32 v6, 7, v0
    v_lshlrev_b32 v6, 4, v6
    v_lshrrev_b32 v7, 3, v0
    v_mul_u32_u24 v7, {2056*16}, v7
    v_add_u32 v6, v6, v7
    v_cmp_gt_u32 vcc, 16, v0
    s_and_saveexec_b64 s[30:31], vcc
    s_cbranch_execz L_f0_z3
    buffer_store_dwordx4 v[8:11], v6, s[{SRD_WS}:{SRD_WS+3}], s26 offen
    """)
    a.label('L_f0_z3')
    a("s_mov_b64 exec, s[30:31]")
    a.label('L_f0_z2')
    gen_tiling(a, stage_base=1024)
    a.label(END)
    a("s_endpgm")

def gen_tiling(a, stage_base):
    GW, Q, R, A_, U = 24, 25, 26, 27, 28
    K0, GS, HS, LD, CB, DST, NT, KIND, PPRM = 76, 77, 78, 79, 80, 81, 82, 83, 84
    DONE = 'L_tl_done'
    a(f"""
    s_lshl_b32 s{GW}, s2, 3
    s_add_u32 s{GW}, s{GW}, s{S_WAVE}
    s_cmp_ge_u32 s{GW}, 1452
    s_cbranch_scc1 {DONE}
    s_cmp_ge_u32 s{GW}, 1392
    s_cbranch_scc1 L_tl_kv
    """)
    a(f"s_mov_b32 s{GS}, 4")
    a(f"s_mov_b32 s{KIND}, 0")
    a(f"s_mov_b32 s{NT}, 5")
    a(f"s_mov_b32 s{LD}, 1280")
    def pi_params(sreg):
        sdivmod(a, A_, U, sreg, 5)
        lab = a.new_label('L_pi'); lab2 = a.new_label('L_pi')
        a(f"""
        s_cmp_eq_u32 s{U}, 4
        s_cbranch_scc1 {lab}
        s_mul_i32 s{K0}, s{A_}, 160
        s_lshr_b32 s29, s{U}, 1
        s_mul_i32 s29, s29, 80
        s_add_u32 s{K0}, s{K0}, s29
        s_and_b32 s29, s{U}, 1
        s_lshl_b32 s29, s29, 5
        s_add_u32 s{K0}, s{K0}, s29
        s_mov_b32 s{HS}, 16
        s_branch {lab2}
        """)
        a.label(lab)
        a(f"""
        s_mul_i32 s{K0}, s{A_}, 160
        s_add_u32 s{K0}, s{K0}, 64
        s_mov_b32 s{HS}, 80
        """)
        a.label(lab2)
    a(f"s_cmp_lt_u32 s{GW}, 160"); a("s_cbranch_scc1 L_tl_wq")
    a(f"s_cmp_lt_u32 s{GW}, 320"); a("s_cbranch_scc1 L_tl_wo")
    a(f"s_cmp_lt_u32 s{GW}, 480"); a("s_cbranch_scc1 L_tl_w1")
    a(f"s_cmp_lt_u32 s{GW}, 640"); a("s_cbranch_scc1 L_tl_w2")
    a(f"s_cmp_lt_u32 s{GW}, 960"); a("s_cbranch_scc1 L_tl_w3")
    a(f"s_sub_u32 s{GW}, s{GW}, 960")
    sdivmod(a, Q, R, GW, 54)
    srd(a, SRD_A, P_W4)
    a(f"""
    s_mul_i32 s{CB}, s{Q}, 160
    s_mul_i32 s{DST}, s{GW}, 5120
    s_add_u32 s{DST}, s{DST}, {WS_W4}
    s_cmp_ge_u32 s{R}, 48
    s_cbranch_scc1 L_tl_w4b
    """)
    sdivmod(a, A_, U, R, 3)
    a(f"""
    s_mul_i32 s{K0}, s{A_}, 112
    s_sub_u32 s29, s{A_}, 12
    s_mul_i32 s29, s29, 96
    s_add_u32 s29, s29, 1344
    s_cmp_lt_u32 s{A_}, 12
    s_cselect_b32 s{K0}, s{K0}, s29
    s_lshl_b32 s29, s{U}, 5
    s_add_u32 s{K0}, s{K0}, s29
    s_mov_b32 s{HS}, 16
    s_branch L_tl_go
    """)
    a.label('L_tl_w4b')
    a(f"""
    s_sub_u32 s29, s{R}, 48
    s_mul_i32 s{K0}, s29, 224
    s_add_u32 s{K0}, s{K0}, 96
    s_mov_b32 s{HS}, 112
    s_branch L_tl_go
    """)
    a.label('L_tl_wq')
    sdivmod(a, Q, R, GW, 20)
    srd(a, SRD_A, P_WQ)
    a(f"""
    s_mul_i32 s{CB}, s{Q}, 160
    s_mul_i32 s{DST}, s{GW}, 6144
    s_add_u32 s{DST}, s{DST}, {WS_WQ}
    s_lshl_b32 s{K0}, s{R}, 5
    s_mov_b32 s{GS}, 8
    s_mov_b32 s{HS}, 4
    s_mov_b32 s{KIND}, 1
    s_branch L_tl_go
    """)
    a.label('L_tl_wo')
    a(f"s_sub_u32 s{GW}, s{GW}, 160")
    sdivmod(a, Q, R, GW, 20)
    srd(a, SRD_A, P_WO)
    a(f"""
    s_mul_i32 s{CB}, s{Q}, 160
    s_mul_i32 s{DST}, s{GW}, 5120
    s_add_u32 s{DST}, s{DST}, {WS_WO}
    s_lshl_b32 s{K0}, s{R}, 2
    s_mov_b32 s{KIND}, 2
    s_branch L_tl_go
    """)
    for lab, p, ws, base in (('L_tl_w1', P_W1, WS_W1, 320), ('L_tl_w2', P_W2, WS_W2, 480)):
        a.label(lab)
        a(f"s_sub_u32 s{GW}, s{GW}, {base}")
        sdivmod(a, Q, R, GW, 20)
        srd(a, SRD_A, p)
        a(f"""
        s_mul_i32 s{CB}, s{Q}, 160
        s_mul_i32 s{DST}, s{GW}, 5120
        s_add_u32 s{DST}, s{DST}, {ws}
        """)
        pi_params(R)
        a("s_branch L_tl_go")
    a.label('L_tl_w3')
    a(f"s_sub_u32 s{GW}, s{GW}, 640")
    sdivmod(a, Q, R, GW, 20)
    srd(a, SRD_A, P_W3)
    a(f"""
    s_mul_i32 s{CB}, s{Q}, 224
    s_sub_u32 s29, s{Q}, 12
    s_mul_i32 s29, s29, 192
    s_add_u32 s29, s29, {1344*2}
    s_cmp_lt_u32 s{Q}, 12
    s_cselect_b32 s{CB}, s{CB}, s29
    s_mul_i32 s{DST}, s{GW}, 7168
    s_add_u32 s{DST}, s{DST}, {WS_W3}
    s_mov_b32 s{LD}, 3456
    s_mov_b32 s{NT}, 7
    """)
    pi_params(R)
    a.label('L_tl_go')
    a("v_and_b32 v1, 63, v0")
    a(f"s_mul_i32 s29, s{S_WAVE}, 7168")
    a(f"s_add_u32 s29, s29, {stage_base}")
    a(f"s_lshl_b32 s30, s{NT}, 1")
    a(f"s_movk_i32 s31, 4682")
    a(f"s_cmp_eq_u32 s{NT}, 5")
    a(f"s_cselect_b32 s31, 6554, s31")
    for q in range(7):
        if q == 5:
            a(f"s_cmp_eq_u32 s{NT}, 5")
            a("s_cbranch_scc1 L_tl_dmadone")
        a(f"v_add_u32 v2, {64*q}, v1")
        a(f"v_mul_u32_u24 v3, s31, v2")
        a(f"v_lshrrev_b32 v3, 16, v3")
        a(f"v_mul_u32_u24 v4, s30, v3")
        a(f"v_sub_u32 v4, v2, v4")
        a(f"v_lshrrev_b32 v5, 3, v3")
        a(f"v_bfe_u32 v6, v3, 2, 1")
        a(f"v_and_b32 v7, 3, v3")
        lab_om = a.new_label('L_om'); lab_k = a.new_label('L_k')
        a(f"s_cmp_eq_u32 s{KIND}, 2")
        a(f"s_cbranch_scc1 {lab_om}")
        a(f"v_mul_u32_u24 v5, s{GS}, v5")
        a(f"v_mul_u32_u24 v6, s{HS}, v6")
        a(f"v_add3_u32 v7, v5, v6, v7")
        a(f"v_add_u32 v7, s{K0}, v7")
        a(f"s_branch {lab_k}")
        a.label(lab_om)
        a(f"""
        v_add_u32 v5, s{K0}, v5
        v_mul_u32_u24 v8, 205, v5
        v_lshrrev_b32 v8, 11, v8
        v_mul_u32_u24 v9, 10, v8
        v_sub_u32 v9, v5, v9
        v_lshrrev_b32 v10, 2, v9
        v_lshlrev_b32 v10, 1, v10
        v_bfe_u32 v11, v9, 1, 1
        v_add_u32 v10, v10, v11
        v_mul_u32_u24 v10, 20, v10
        v_and_b32 v11, 1, v9
        v_lshlrev_b32 v11, 2, v11
        v_lshl_add_u32 v11, v6, 3, v11
        v_add_u32 v10, v10, v11
        v_lshl_add_u32 v11, v6, 1, v9
        v_subrev_u32 v11, 8, v11
        v_mul_u32_u24 v11, 20, v11
        v_add_u32 v11, 16, v11
        v_cmp_gt_u32 vcc, 8, v9
        v_mul_u32_u24 v8, 80, v8
        s_nop 0
        v_cndmask_b32 v10, v11, v10, vcc
        v_add3_u32 v7, v8, v10, v7
        """)
        a.label(lab_k)
        a(f"v_mul_lo_u32 v7, v7, s{LD}")
        a(f"v_lshl_add_u32 v7, v4, 4, v7")
        a(f"s_add_u32 m0, s29, {1024*q}")
        a(f"s_nop 0")
        a(f"buffer_load_dwordx4 v7, s[{SRD_A}:{SRD_A+3}], s{CB} offen lds")
    a.label('L_tl_dmadone')
    a(f"""
    v_lshrrev_b32 v2, 4, v1
    v_lshlrev_b32 v2, 3, v2
    v_bfe_u32 v3, v1, 2, 2
    v_add_u32 v2, v2, v3
    s_lshl_b32 s31, s30, 4
    v_mul_u32_u24 v2, s31, v2
    v_add_u32 v2, s29, v2
    v_and_b32 v3, 3, v1
    v_lshlrev_b32 v4, 3, v3
    v_and_b32 v5, 1, v3
    v_mul_u32_u24 v5, 40, v5
    v_lshrrev_b32 v6, 1, v3
    v_lshl_add_u32 v5, v6, 4, v5
    v_mul_u32_u24 v6, 40, v3
    v_add_u32 v6, 32, v6
    s_cmp_eq_u32 s{KIND}, 1
    s_cselect_b64 vcc, -1, 0
    v_add_u32 v7, 128, v4
    v_cndmask_b32 v4, v4, v5, vcc
    v_cndmask_b32 v7, v7, v6, vcc
    v_add_u32 v8, v2, v4
    v_add_u32 v9, v2, v7
    s_lshl_b32 s31, s30, 6
    v_add_u32 v10, s31, v8
    v_add_u32 v11, s31, v9
    """)
    a(f"v_lshlrev_b32 v12, 4, v1")
    a("s_waitcnt vmcnt(0)")
    lab_q = a.new_label('L_trq'); lab_e = a.new_label('L_tre')
    a(f"s_cmp_eq_u32 s{KIND}, 1")
    a(f"s_cbranch_scc1 {lab_q}")
    for tt in range(7):
        if tt == 4:
            a(f"ds_read_b64_tr_b16 v[{16+4*tt}:{17+4*tt}], v9")
            a(f"ds_read_b64_tr_b16 v[{18+4*tt}:{19+4*tt}], v11")
        else:
            a(f"ds_read_b64_tr_b16 v[{16+4*tt}:{17+4*tt}], v8 offset:{32*tt}")
            a(f"ds_read_b64_tr_b16 v[{18+4*tt}:{19+4*tt}], v10 offset:{32*tt}")
    a(f"s_branch {lab_e}")
    a.label(lab_q)
    for tt, off in enumerate((0, 8, 80, 88)):
        a(f"ds_read_b64_tr_b16 v[{16+4*tt}:{17+4*tt}], v8 offset:{off}")
        a(f"ds_read_b64_tr_b16 v[{18+4*tt}:{19+4*tt}], v10 offset:{off}")
    a(f"ds_read_b64_tr_b16 v[32:33], v9")
    a(f"ds_read_b64_tr_b16 v[34:35], v11")
    a.label(lab_e)
    a("s_waitcnt lgkmcnt(0)")
    for tt in range(7):
        if tt == 5:
            a(f"s_cmp_eq_u32 s{NT}, 5")
            a(f"s_cbranch_scc1 {DONE}")
        a(f"s_add_u32 s31, s{DST}, {1024*tt}")
        a(f"buffer_store_dwordx4 v[{16+4*tt}:{19+4*tt}], v12, s[{SRD_WS}:{SRD_WS+3}], s31 offen")
    a(f"s_branch {DONE}")
    a.label('L_tl_kv')
    a(f"s_sub_u32 s{GW}, s{GW}, 1392")
    sdivmod(a, Q, R, GW, 20)
    srd(a, SRD_A, P_WK)
    srd(a, SRD_B, P_WV)
    a(f"""
    v_and_b32 v1, 63, v0
    v_and_b32 v2, 15, v1
    v_lshrrev_b32 v3, 4, v1
    s_lshl_b32 s29, s{R}, 5
    v_lshl_add_u32 v3, v3, 3, s29
    v_mul_u32_u24 v3, 40, v3
    v_mov_b32 v6, 0x7fffffff
    """)
    lab1 = a.new_label('L_kv'); lab2 = a.new_label('L_kv'); lab3 = a.new_label('L_kv')
    a(f"""
    s_cmp_eq_u32 s{Q}, 1
    s_cbranch_scc1 {lab1}
    s_cmp_eq_u32 s{Q}, 2
    s_cbranch_scc1 {lab2}
    v_lshl_add_u32 v4, v2, 1, v3
    v_mov_b32 v5, v6
    s_branch {lab3}
    """)
    a.label(lab1)
    a(f"""
    v_mov_b32 v4, v6
    v_lshl_add_u32 v5, v2, 1, v3
    s_branch {lab3}
    """)
    a.label(lab2)
    a(f"""
    v_lshl_add_u32 v4, v2, 1, v3
    v_add_u32 v4, 32, v4
    v_add_u32 v5, -8, v4
    v_cmp_gt_u32 vcc, 4, v2
    s_nop 1
    v_cndmask_b32 v4, v6, v4, vcc
    v_subrev_u32 v7, 4, v2
    v_cmp_gt_u32 vcc, 4, v7
    s_nop 1
    v_cndmask_b32 v5, v6, v5, vcc
    """)
    a.label(lab3)
    for jj in range(8):
        a(f"buffer_load_ushort v{16+jj}, v4, s[{SRD_A}:{SRD_A+3}], 0 offen offset:{40*jj}")
        a(f"buffer_load_ushort v{24+jj}, v5, s[{SRD_B}:{SRD_B+3}], 0 offen offset:{40*jj}")
    a("s_waitcnt vmcnt(0)")
    for jj in range(8):
        a(f"v_or_b32 v{16+jj}, v{16+jj}, v{24+jj}")
    for e in range(4):
        a(f"v_lshl_or_b32 v{32+e}, v{17+2*e}, 16, v{16+2*e}")
    a(f"""
    s_mul_i32 s31, s{GW}, 6144
    s_add_u32 s31, s31, {WS_WQ + 5*1024}
    v_lshlrev_b32 v12, 4, v1
    buffer_store_dwordx4 v[32:35], v12, s[{SRD_WS}:{SRD_WS+3}], s31 offen
    """)
    a.label(DONE)
```

```python
from common import *
import os
import common
from k_qkv import f32bits
import k_attn as AT
import k_chain as CHN

W_, KH, ROW0, M_, FLAGV = 75, 76, 77, 78, 79
SWS = f"s[{SRD_WS}:{SRD_WS+3}]"
SA_, SB_, SC_ = f"s[{SRD_A}:{SRD_A+3}]", f"s[{SRD_B}:{SRD_B+3}]", f"s[{SRD_C}:{SRD_C+3}]"
DBG_NONCE = 128
WS_XC = WS_FLAGS + 14 * 4096
L_X = 0
L_WQB, L_KVW, L_GA = 0, 51200, 76800
L_WQA = 81920
L_F = 133120
L_M = 143360
L_NONCE, L_C, L_SC16, L_STX, L_DUMMY, L_UNS = L_F, L_F + 64, L_F + 2048, L_F + 4096, L_F + 5120, L_F + 6144

def front(a, poll_generic):
    a("s_getreg_b32 s4, hwreg(HW_REG_XCC_ID, 0, 4)")
    srd(a, SRD_C, P_DBG)
    a(f"""
    s_and_b32 s{W_}, s{S_WAVE}, 3
    s_lshr_b32 s{KH}, s{S_WAVE}, 2
    s_lshl_b32 s{ROW0}, s{S_X}, 8
    s_lshl_b32 s24, s{S_B}, 6
    s_add_u32 s{ROW0}, s{ROW0}, s24
    s_lshr_b32 s{M_}, s{ROW0}, 4
    s_add_u32 s{M_}, s{M_}, s{W_}
    v_lshlrev_b32 v6, 4, v1
    """)
    import os
    if os.environ.get('TLBW', '0') == '1':
        tl = [(1, P_X), (2, P_WQ), (3, P_WS), (4, P_WK), (5, P_WV), (6, P_WO), (7, P_W1)]
        for w, p in tl:
            lab = a.new_label('L_tw')
            a(f"s_cmp_lg_u32 s{S_WAVE}, {w}"); a(f"s_cbranch_scc1 {lab}")
            srd(a, SRD_A, p)
            a("v_mov_b32 v7, 0")
            a("s_mov_b64 exec, 1")
            off = {P_X: "s24", P_WS: "s25"}.get(p, "0")
            if p == P_X: a(f"s_mul_i32 s24, s{ROW0}, 1280")
            if p == P_WS: a(f"s_mov_b32 s25, {WS_MODT}")
            a(f"buffer_load_dword v250, v7, {SA_}, {off} offen")
            a("s_mov_b64 exec, -1")
            a.label(lab)
    a(f"""
    s_cmp_lg_u32 s{S_WAVE}, 0
    s_cbranch_scc1 L_f_w0
    """)
    a(f"""
    s_cmp_lg_u32 s2, 0
    s_cbranch_scc1 L_f_non
    s_memrealtime s[24:25]
    s_waitcnt lgkmcnt(0)
    s_or_b32 s24, s24, 1
    v_mov_b32 v8, s24
    v_mov_b32 v9, {DBG_NONCE}
    s_mov_b64 exec, 1
    buffer_store_dword v8, v9, {SC_}, 0 offen sc1
    s_mov_b64 exec, -1
    """)
    a.label("L_f_non")
    a(f"""
    s_mul_i32 s32, s{S_X}, 10
    s_add_u32 s32, s32, s{S_T}
    s_mul_i32 s26, s{S_X}, 20
    s_add_u32 s26, s26, s{S_T}
    s_add_u32 s26, s26, 70
    s_cmp_lt_u32 s{S_T}, 10
    s_cselect_b32 s32, s32, s26
    s_cmp_lt_u32 s{S_T}, 30
    s_cselect_b32 s32, s32, 255
    """)
    srd(a, SRD_A, P_C)
    srd(a, SRD_B, P_WMOD)
    a(f"""
    s_mov_b32 m0, {L_C}
    v_lshrrev_b32 v7, 1, v1
    buffer_load_dwordx4 v6, {SA_}, 0 offen lds
    buffer_load_dwordx4 v6, {SA_}, 0 offen offset:1024 lds
    v_mul_u32_u24 v7, 7680, v7
    v_and_b32 v8, 1, v1
    v_lshl_add_u32 v7, v8, 4, v7
    s_lshl_b32 s25, s32, 5
    s_min_u32 s25, s25, {239*32}
    s_mov_b32 s26, {L_M}
    s_movk_i32 s27, 20
    """)
    a.label("L_f_ml")
    a(f"""
    s_mov_b32 m0, s26
    s_add_u32 s26, s26, 1024
    buffer_load_dwordx4 v7, {SB_}, s25 offen lds
    s_add_u32 s25, s25, {32*7680}
    s_sub_u32 s27, s27, 1
    s_cmp_lg_u32 s27, 0
    s_cbranch_scc1 L_f_ml
    """)
    a(f"v_mov_b32 v10, {DBG_NONCE}")
    a(f"buffer_load_dword v11, v10, {SC_}, 0 offen sc1")
    a("s_barrier")
    a("s_branch L_f_m")
    a.label("L_f_w0")
    srd(a, SRD_B, P_X)
    a(f"""
    v_lshrrev_b32 v7, 2, v1
    v_and_b32 v8, 3, v1
    v_bfe_u32 v9, v7, 1, 2
    v_xor_b32 v8, v8, v9
    v_mul_u32_u24 v7, 1280, v7
    v_lshl_add_u32 v9, v8, 4, v7
    s_lshr_b32 s24, s{S_WAVE}, 1
    s_lshl_b32 s24, s24, 4
    s_add_u32 s24, s24, s{ROW0}
    s_mul_i32 s24, s24, 1280
    s_and_b32 s25, s{S_WAVE}, 1
    s_mul_i32 s25, s25, 640
    s_add_u32 s24, s24, s25
    s_mul_i32 s25, s{S_WAVE}, 10240
    s_mov_b32 m0, s25
    s_add_u32 s26, s25, 4096
    s_add_u32 s27, s25, 8192
    """)
    a("s_barrier")
    for q in range(10):
        if q: a(f"s_add_u32 m0, s25, {1024*q}")
        if q: a(f"s_add_u32 s24, s24, 64")
        a(f"buffer_load_dwordx4 v9, {SB_}, s24 offen lds")
    a(f"s_cmp_ge_u32 s{S_WAVE}, 6"); a("s_cbranch_scc1 L_f_x0")
    a(f"""
    s_sub_u32 s25, s{S_WAVE}, 1
    s_lshl_b32 s26, s25, 7
    s_mul_i32 s24, s{ROW0}, 1280
    s_add_u32 s24, s24, s26
    s_lshl_b32 s25, s25, 11
    s_mov_b32 m0, s25
    s_add_u32 s26, s24, 64
    buffer_load_dwordx4 v9, {SB_}, s24 offen lds
    s_add_u32 m0, s25, 1024
    s_nop 0
    buffer_load_dwordx4 v9, {SB_}, s26 offen lds
    """)
    a.label("L_f_x0")
    srd(a, SRD_A, P_WQ)
    for q5 in range(5):
        a(f"v_add_u32 v7, {64*q5}, v1")
        a(f"v_mul_u32_u24 v8, 6554, v7")
        a(f"v_lshrrev_b32 v8, 16, v8")
        a(f"v_mul_u32_u24 v10, 10, v8")
        a(f"v_sub_u32 v7, v7, v10")
        a(f"v_mul_u32_u24 v8, 1280, v8")
        a(f"v_lshl_add_u32 v{240+q5}, v7, 4, v8")
    a(f"s_mul_i32 s34, s{S_J}, 160")
    def wq_step(sreg, lbase, s0):
        a(f"s_mul_i32 s25, s{sreg}, 40960")
        a(f"s_add_u32 s25, s25, s34")
        if s0: a(f"s_add_u32 s25, s25, {s0*40960}")
        a(f"s_mul_i32 s26, s{sreg}, 5120")
        a(f"s_add_u32 s26, s26, {lbase}")
        for q5 in range(5):
            a(f"s_add_u32 m0, s26, {1024*q5}")
            a("s_nop 0")
            a(f"buffer_load_dwordx4 v{240+q5}, {SA_}, s25 offen lds")
    a(f"s_sub_u32 s24, s{S_WAVE}, 1")
    wq_step(24, L_WQA, 0)
    a(f"s_cmp_lt_u32 s{S_WAVE}, 5"); a("s_cbranch_scc1 L_f_xw")
    a(f"s_add_u32 s24, s{S_WAVE}, 2")
    wq_step(24, L_WQA, 0)
    a("s_waitcnt vmcnt(10)")
    a("s_branch L_f_xb")
    a.label("L_f_m")
    stamp(a, 1)
    srd(a, SRD_A, P_WQ)
    for q5 in range(5):
        a(f"v_add_u32 v7, {64*q5}, v1")
        a(f"v_mul_u32_u24 v8, 6554, v7")
        a(f"v_lshrrev_b32 v8, 16, v8")
        a(f"v_mul_u32_u24 v10, 10, v8")
        a(f"v_sub_u32 v7, v7, v10")
        a(f"v_mul_u32_u24 v8, 1280, v8")
        a(f"v_lshl_add_u32 v{240+q5}, v7, 4, v8")
    a(f"s_mul_i32 s34, s{S_J}, 160")
    a("s_waitcnt vmcnt(21)")
    a(f"v_lshlrev_b32 v7, 1, v1")
    a(f"v_add_u32 v7, {L_C}, v7")
    for q in range(10): a(f"ds_read_u16 v{12+q}, v7 offset:{128*q}")
    a("s_waitcnt lgkmcnt(0)")
    for q in range(10): a(f"v_lshlrev_b32 v{12+q}, 16, v{12+q}")
    for q in range(10): a(f"v_mul_f32 v{22+q}, 0xbfb8aa3b, v{12+q}")
    for q in range(10): a(f"v_exp_f32 v{22+q}, v{22+q}")
    for q in range(10): a(f"v_add_f32 v{22+q}, 1.0, v{22+q}")
    for q in range(10): a(f"v_rcp_f32 v{22+q}, v{22+q}")
    for q in range(10): a(f"v_mul_f32 v{12+q}, v{12+q}, v{22+q}")
    for q in range(10): a(f"v_cvt_pk_bf16_f32 v{12+q}, v{12+q}, v{12+q}")
    a(f"v_add_u32 v7, {L_SC16 - L_C}, v7")
    for q in range(10): a(f"ds_write_b16 v7, v{12+q} offset:{128*q}")
    a(f"""
    v_lshrrev_b32 v8, 2, v2
    v_lshl_add_u32 v8, v3, 2, v8
    v_lshlrev_b32 v8, 5, v8
    v_and_b32 v10, 3, v2
    v_lshl_add_u32 v8, v10, 3, v8
    v_add_u32 v8, {L_M}, v8
    v_lshlrev_b32 v98, 3, v3
    v_add_u32 v98, {L_SC16}, v98
    v_mov_b32 v12, 0
    v_mov_b32 v13, 0
    v_mov_b32 v14, 0
    v_mov_b32 v15, 0
    s_waitcnt vmcnt(0) lgkmcnt(0)
    """)
    stamp(a, 2)
    for half in range(2):
        for s5 in range(10):
            s = 10*half + s5
            b = 16 + 8*s5
            a(f"ds_read_b64_tr_b16 v[{b}:{b+1}], v8 offset:{1024*s}")
            a(f"ds_read_b64_tr_b16 v[{b+2}:{b+3}], v8 offset:{1024*s+512}")
            a(f"ds_read_b64 v[{b+4}:{b+5}], v98 offset:{64*s}")
            a(f"ds_read_b64 v[{b+6}:{b+7}], v98 offset:{64*s+32}")
            if s5 in (2, 4, 6, 8): a("s_waitcnt lgkmcnt(4)")
        a("s_waitcnt lgkmcnt(0)")
        for s5 in range(10):
            b = 16 + 8*s5
            a(CHN.mf16(12, b, b + 4))
    a("s_mov_b32 s101, 0x40000")
    a.label("L_f_npl")
    a(f"v_readfirstlane_b32 s{FLAGV}, v11")
    a("s_sub_u32 s101, s101, 1")
    a(f"s_cmp_lg_u32 s{FLAGV}, 0")
    a("s_cbranch_scc1 L_f_npd")
    a("s_cmp_eq_u32 s101, 0")
    a("s_cbranch_scc1 L_f_npd")
    a(f"v_mov_b32 v10, {DBG_NONCE}")
    a(f"buffer_load_dword v11, v10, {SC_}, 0 offen sc1")
    a("s_waitcnt vmcnt(0)")
    a("s_branch L_f_npl")
    a.label("L_f_npd")
    a(f"v_mov_b32 v10, {L_NONCE}")
    a(f"ds_write_b32 v10, v11")
    a(f"s_cmp_ge_u32 s32, 240"); a("s_cbranch_scc1 L_f_pb2")
    a(f"""
    v_cvt_pk_bf16_f32 v16, v12, v13
    v_cvt_pk_bf16_f32 v17, v14, v15
    v_lshlrev_b32 v20, 16, v16
    v_mov_b32 v21, s{FLAGV}
    v_and_b32 v22, 0xffff0000, v16
    v_mov_b32 v23, s{FLAGV}
    v_lshlrev_b32 v24, 16, v17
    v_mov_b32 v25, s{FLAGV}
    v_and_b32 v26, 0xffff0000, v17
    v_mov_b32 v27, s{FLAGV}
    v_lshlrev_b32 v18, 5, v3
    s_lshl_b32 s24, s32, 7
    s_add_u32 s24, s24, {WS_MODT}
    s_mov_b32 exec_lo, 0x00010001
    s_mov_b32 exec_hi, 0x00010001
    buffer_store_dwordx4 v[20:23], v18, {SWS}, s24 offen sc1
    buffer_store_dwordx4 v[24:27], v18, {SWS}, s24 offen offset:16 sc1
    s_mov_b64 exec, -1
    """)
    a.label("L_f_pb2")
    a(f"""
    s_and_b32 s26, s{FLAGV}, 0xfffffff0
    s_or_b32 s26, s26, s4
    v_mov_b32 v8, s26
    s_lshl_b32 s26, s{S_X}, 5
    s_add_u32 s26, s26, s{S_T}
    s_lshl_b32 s26, s26, 2
    s_add_u32 s26, s26, {WS_XC}
    v_mov_b32 v9, 0
    s_mov_b64 exec, 1
    buffer_store_dword v8, v9, {SWS}, s26 offen sc1
    s_mov_b64 exec, -1
    s_waitcnt lgkmcnt(0)
    """)
    stamp(a, 3)
    a("s_branch L_f_xb")
    a.label("L_f_xw")
    a("s_waitcnt vmcnt(5)")
    a.label("L_f_xb")
    a("s_barrier")
    stamp(a, 4)
    a(f"v_mov_b32 v7, {L_NONCE}")
    a("ds_read_b32 v11, v7")
    XF = 100
    a(f"""
    v_lshrrev_b32 v4, 1, v3
    v_bfe_u32 v5, v2, 1, 2
    v_xor_b32 v4, v4, v5
    v_lshlrev_b32 v4, 4, v4
    v_lshl_add_u32 v4, v2, 6, v4
    v_and_b32 v5, 1, v3
    v_lshl_add_u32 v4, v5, 3, v4
    s_mul_i32 s24, s{W_}, {20*1024}
    s_mul_i32 s25, s{KH}, {5*1024}
    s_add_u32 s24, s24, s25
    v_add_u32 v4, s24, v4
    v_xor_b32 v5, 32, v4
    """)
    for q in range(10):
        off = 1024*q if q < 5 else 1024*(q + 5)
        a(f"ds_read_b64 v[{XF+4*q}:{XF+4*q+1}], v4 offset:{off}")
        a(f"ds_read_b64 v[{XF+4*q+2}:{XF+4*q+3}], v5 offset:{off}")
    a("s_waitcnt lgkmcnt(0)")
    a(f"v_readfirstlane_b32 s{FLAGV}, v11")
    a("s_barrier")
    a(f"s_cmp_ge_u32 s{S_J}, 2"); a("s_cbranch_scc1 L_f_nokv")
    a(f"s_cmp_eq_u32 s{S_J}, 0")
    a(f"s_cselect_b32 s{SRD_B}, s{ptr(P_WK)}, s{ptr(P_WV)}")
    a(f"s_cselect_b32 s{SRD_B+1}, s{ptr(P_WK)+1}, s{ptr(P_WV)+1}")
    a(f"s_mov_b32 s{SRD_B+2}, {640*40}")
    a(f"s_mov_b32 s{SRD_B+3}, 0x00020000")
    for i in range(4):
        a(f"s_add_u32 s24, s{S_WAVE}, {8*i}")
        a(f"s_lshl_b32 s25, s24, 10")
        a(f"s_add_u32 s26, s25, {L_KVW}")
        a(f"s_cmp_lt_u32 s24, 25")
        a(f"s_cselect_b32 s26, s26, {L_DUMMY}")
        a(f"s_mov_b32 m0, s26")
        a("s_nop 0")
        a(f"buffer_load_dwordx4 v6, {SB_}, s25 offen lds")
    a.label("L_f_nokv")
    a(f"""
    s_cmp_lg_u32 s{S_WAVE}, 6
    s_cbranch_scc1 L_f_z
    v_mov_b32 v8, 0
    v_mov_b32 v9, 0
    v_mov_b32 v10, 0
    v_mov_b32 v11, 0
    s_cmp_ge_u32 s2, 16
    s_cbranch_scc1 L_f_z1
    s_lshl_b32 s26, s2, 10
    s_add_u32 s26, s26, {WS_CV}
    buffer_store_dwordx4 v[8:11], v6, {SWS}, s26 offen sc1
    """)
    a.label("L_f_z1")
    a(f"""
    s_cmp_ge_u32 s2, 80
    s_cbranch_scc1 L_f_z
    s_mul_i32 s26, s2, {PLANE}
    s_add_u32 s26, s26, {WS_O}
    v_and_b32 v12, 7, v1
    v_lshlrev_b32 v12, 4, v12
    v_lshrrev_b32 v13, 3, v1
    v_mul_u32_u24 v13, {2056*16}, v13
    v_add_u32 v12, v12, v13
    s_mov_b64 exec, 0xffff
    buffer_store_dwordx4 v[8:11], v12, {SWS}, s26 offen sc1
    s_mov_b64 exec, -1
    """)
    a.label("L_f_z")
    stamp(a, 5)
    for r in range(4): a(f"v_mov_b32 v{48+r}, 0x3f803f80")
    for r in range(8): a(f"v_mov_b32 v{52+r}, 0")
    a("s_nop 0")
    for q in range(10):
        a(CHN.mf16(52, 48, XF + 4*q))
        a(CHN.mf16(56, XF + 4*q, XF + 4*q))
    a("v_lshlrev_b32 v60, 2, v3")
    a("v_sub_u32 v60, v2, v60")
    a("s_nop 4")
    a("v_mov_b32 v61, 0")
    for r in range(4):
        a(f"v_cmp_eq_u32 vcc, {r}, v60")
        a("s_nop 1")
        a(f"v_cndmask_b32 v61, v61, v{56+r}, vcc")
    a("v_mov_b32 v57, v61")
    a("v_mov_b32 v56, v52")
    reduce_g(a, [57], [58])
    a(f"""
    s_lshl_b32 s27, s{S_WAVE}, 7
    s_add_u32 s27, s27, {L_STX}
    v_lshl_add_u32 v7, v2, 3, s27
    ds_write_b64 v7, v[56:57]
    s_xor_b32 s28, s{S_WAVE}, 4
    s_lshl_b32 s28, s28, 7
    s_add_u32 s28, s28, {L_STX}
    v_lshl_add_u32 v7, v2, 3, s28
    s_waitcnt lgkmcnt(0)
    s_barrier
    ds_read_b64 v[58:59], v7
    s_waitcnt lgkmcnt(0)
    v_add_f32 v56, v56, v58
    v_add_f32 v57, v57, v59
    v_mul_f32 v56, 0x3acccccd, v56
    v_mul_f32 v57, 0x3acccccd, v57
    v_fma_f32 v57, -v56, v56, v57
    v_add_f32 v57, 0x3727c5ac, v57
    v_rsq_f32 v57, v57
    s_nop 0
    v_mul_f32 v56, v56, v57
    v_sub_f32 v56, 0, v56
    """)
    XN = 8
    XN = 140
    for r in range(40):
        a(f"v_lshlrev_b32 v{XN+2*r}, 16, v{XF+r}")
        a(f"v_and_b32 v{XN+2*r+1}, 0xffff0000, v{XF+r}")
    for r in range(0, 80, 2):
        a(f"v_pk_fma_f32 v[{XN+r}:{XN+r+1}], v[{XN+r}:{XN+r+1}], v[56:57], v[56:57] op_sel:[0,1,0] op_sel_hi:[1,1,0]")
    stamp(a, 6)
    a(f"s_cmp_ge_u32 s{S_WAVE}, 5"); a("s_cbranch_scc1 L_f_mp")
    a("v_lshlrev_b32 v7, 4, v0")
    a(f"s_mov_b32 s28, {WS_MODT}")
    poll_generic(a, 7, 8, "s28", [9, 11], 4)
    a(f"s_mov_b32 s28, {WS_MODT + 640*8}")
    poll_generic(a, 7, 12, "s28", [13, 15], 4)
    a(f"""
    v_add_f32 v12, 1.0, v12
    v_add_f32 v14, 1.0, v14
    v_cvt_pk_bf16_f32 v12, v12, v14
    v_and_b32 v13, 0xffff0000, v12
    v_lshlrev_b32 v12, 16, v12
    v_mov_b32 v9, v10
    v_lshlrev_b32 v7, 3, v0
    v_add_u32 v7, {L_GA}, v7
    ds_write_b64 v7, v[12:13]
    ds_write_b64 v7, v[8:9] offset:2560
    """)
    a.label("L_f_mp")
    a("s_waitcnt vmcnt(0) lgkmcnt(0)")
    a("s_barrier")
    stamp(a, 7)
    ACC = 64
    WF = (8, 36)
    GB = (48, 220)
    for r in range(28): a(f"v_mov_b32 v{ACC+r}, 0")
    a(f"""
    v_lshrrev_b32 v6, 2, v2
    v_lshl_add_u32 v6, v3, 2, v6
    v_and_b32 v7, 3, v2
    v_and_b32 v92, 1, v7
    v_mul_u32_u24 v92, 40, v92
    v_lshrrev_b32 v93, 1, v7
    v_lshl_add_u32 v92, v93, 4, v92
    v_mul_u32_u24 v93, 40, v7
    v_add_u32 v93, 32, v93
    v_mul_u32_u24 v94, 160, v6
    s_mul_i32 s24, s{KH}, {5*5120}
    v_add_u32 v94, s24, v94
    v_add_u32 v92, v92, v94
    v_add_u32 v93, v93, v94
    v_add_u32 v96, {L_WQA}, v92
    v_add_u32 v97, {L_WQA}, v93
    v_mul_u32_u24 v94, 40, v6
    v_lshl_add_u32 v94, v7, 3, v94
    s_mul_i32 s24, s{KH}, {5*1280}
    s_add_u32 s24, s24, {L_KVW}
    v_add_u32 v94, s24, v94
    s_mul_i32 s24, s{KH}, {5*128}
    s_add_u32 s24, s24, {L_GA}
    v_lshl_add_u32 v95, v3, 4, s24
    s_cmp_lt_u32 s{S_J}, 2
    s_cselect_b32 s35, 1, 0
    s_cmp_eq_u32 s{S_J}, 1
    s_cselect_b32 s36, 1, 0
    s_mov_b32 s38, 0
    """)
    def kglob(q): return q if q < 5 else q + 5
    def gsread(q):
        gb = GB[q & 1]; kg = kglob(q)
        a(f"ds_read_b128 v[{gb}:{gb+3}], v95 offset:{128*kg}")
        a(f"ds_read_b128 v[{gb+4}:{gb+7}], v95 offset:{128*kg+64}")
        a(f"ds_read_b128 v[{gb+8}:{gb+11}], v95 offset:{128*kg+2560}")
        a(f"ds_read_b128 v[{gb+12}:{gb+15}], v95 offset:{128*kg+2560+64}")
    gsread(0)
    for q in range(10):
        gb = GB[q & 1]; h = XF + 4*q
        if q + 1 < 10:
            gsread(q + 1); a("s_waitcnt lgkmcnt(4)")
        else:
            a("s_waitcnt lgkmcnt(0)")
        for e in range(0, 8, 2):
            a(f"v_pk_fma_f32 v[{XN+8*q+e}:{XN+8*q+e+1}], v[{XN+8*q+e}:{XN+8*q+e+1}], v[{gb+e}:{gb+e+1}], v[{gb+8+e}:{gb+8+e+1}]")
        for e in range(4):
            a(f"v_cvt_pk_bf16_f32 v{h+e}, v{XN+8*q+2*e}, v{XN+8*q+2*e+1}")
    stamp(a, 8)
    a(f"s_sub_u32 s24, s{S_WAVE}, 4"); a("s_cmp_lt_u32 s24, 2"); a("s_cbranch_scc1 L_f_q3")
    a(f"s_mov_b32 s24, s{S_WAVE}")
    a(f"s_cmp_lt_u32 s{S_WAVE}, 4"); a("s_cbranch_scc1 L_f_q5")
    a(f"s_sub_u32 s24, s{S_WAVE}, 2")
    wq_step(24, L_WQB, 10)
    a("s_branch L_f_q3")
    a.label("L_f_q5")
    wq_step(24, L_WQB, 10)
    a(f"s_add_u32 s24, s{S_WAVE}, 6")
    wq_step(24, L_WQB, 10)
    a.label("L_f_q3")
    A0, A1 = ACC + 20, ACC + 24
    L_KVX = 143360
    L_KVI = 143360 + 8192
    a(f"s_cmp_ge_u32 s{S_J}, 2"); a("s_cbranch_scc1 L_f_kvd")
    KW = 140
    for batch in range(2):
        for q5 in range(5):
            q = 5*batch + q5; o2 = kglob(q) * 1280; b = KW + 8*q5
            for tt in range(2):
                a(f"ds_read_b64_tr_b16 v[{b+4*tt}:{b+4*tt+1}], v94 offset:{o2+32*tt}")
                a(f"ds_read_b64_tr_b16 v[{b+4*tt+2}:{b+4*tt+3}], v94 offset:{o2+32*tt+640}")
            if q5 in (2,): a("s_waitcnt lgkmcnt(4)")
        a("s_waitcnt lgkmcnt(0)")
        lk2 = a.new_label('L_f_kv'); lk3 = a.new_label('L_f_kv')
        a("s_cmp_eq_u32 s36, 1"); a(f"s_cbranch_scc1 {lk2}")
        for q5 in range(5):
            for tt in range(2): a(CHN.mf16(A0 + 4*tt, KW + 8*q5 + 4*tt, XF + 4*(5*batch + q5)))
        a(f"s_branch {lk3}")
        a.label(lk2)
        for q5 in range(5):
            for tt in range(2): a(CHN.mf16(A0 + 4*tt, XF + 4*(5*batch + q5), KW + 8*q5 + 4*tt))
        a.label(lk3)
    a(f"""
    s_lshl_b32 s24, s{W_}, 11
    s_add_u32 s24, s24, {L_KVX}
    v_lshl_add_u32 v6, v1, 4, s24
    s_cmp_eq_u32 s{KH}, 0
    s_cbranch_scc1 L_f_kx
    s_nop 4
    ds_write_b128 v6, v[{A0}:{A0+3}]
    ds_write_b128 v6, v[{A1}:{A1+3}] offset:1024
    s_waitcnt lgkmcnt(0)
    """)
    a.label("L_f_kx")
    a("s_barrier")
    a(f"s_cmp_eq_u32 s{KH}, 0"); a("s_cbranch_scc0 L_f_kvb")
    a(f"""
    ds_read_b128 v[28:31], v6
    ds_read_b128 v[32:35], v6 offset:1024
    s_lshr_b32 s24, s{W_}, 1
    s_lshl_b32 s24, s24, 11
    s_add_u32 s24, s24, {L_KVI}
    s_and_b32 s25, s{W_}, 1
    v_mov_b32 v36, 0x3f803f80
    v_mov_b32 v37, 0x00003f80
    s_waitcnt lgkmcnt(0)
    """)
    for r in range(4):
        a(f"v_add_f32 v{A0+r}, v{A0+r}, v{28+r}"); a(f"v_add_f32 v{A1+r}, v{A1+r}, v{32+r}")
    a(f"""
    v_cvt_pk_bf16_f32 v28, v{A0}, v{A0+1}
    v_cvt_pk_bf16_f32 v29, v{A0+2}, v{A0+3}
    v_cvt_pk_bf16_f32 v30, v{A1}, v{A1+1}
    v_cvt_pk_bf16_f32 v31, v{A1+2}, v{A1+3}
    s_cmp_eq_u32 s{S_J}, 1
    s_cbranch_scc1 L_f_v
    s_lshl_b32 s26, s25, 4
    v_add_u32 v33, s26, v2
    v_lshrrev_b32 v34, 1, v3
    v_lshl_add_u32 v34, v34, 5, v33
    v_lshlrev_b32 v34, 4, v34
    v_and_b32 v35, 1, v3
    v_lshl_add_u32 v34, v35, 3, v34
    v_add_u32 v34, s24, v34
    ds_write_b64 v34, v[28:29]
    v_cmp_eq_u32 vcc, 1, v3
    v_lshl_add_u32 v34, v3, 5, v33
    v_lshlrev_b32 v34, 3, v34
    v_cndmask_b32 v30, v30, v36, vcc
    v_cndmask_b32 v31, v31, v37, vcc
    v_add_u32 v34, s24, v34
    s_mov_b64 exec, 0xffffffff
    ds_write_b64 v34, v[30:31] offset:1024
    s_mov_b64 exec, -1
    v_mul_f32 v32, v{A0}, v{A0}
    v_fmac_f32 v32, v{A0+1}, v{A0+1}
    v_fmac_f32 v32, v{A0+2}, v{A0+2}
    v_fmac_f32 v32, v{A0+3}, v{A0+3}
    v_mul_f32 v39, v{A1}, v{A1}
    v_fmac_f32 v39, v{A1+1}, v{A1+1}
    v_fmac_f32 v39, v{A1+2}, v{A1+2}
    v_fmac_f32 v39, v{A1+3}, v{A1+3}
    v_cmp_eq_u32 vcc, 0, v3
    s_nop 1
    v_cndmask_b32 v39, 0, v39, vcc
    v_add_f32 v32, v32, v39
    """)
    reduce_g(a, [32], [40])
    for st_ in (1, 2, 4, 8):
        a("s_nop 1")
        a(f"v_max_f32_dpp v32, v32, v32 row_shr:{st_} row_mask:0xf bank_mask:0xf")
    a(f"""
    s_lshl_b32 s27, s25, 2
    s_add_u32 s27, s27, s24
    v_mov_b32 v34, s27
    v_cmp_eq_u32 vcc, 15, v1
    s_and_saveexec_b64 s[30:31], vcc
    ds_write_b32 v34, v32 offset:1536
    s_mov_b64 exec, s[30:31]
    s_branch L_f_kvb
    """)
    a.label("L_f_v")
    a(f"""
    v_and_b32 v34, 1, v3
    v_lshl_add_u32 v34, v34, 5, v2
    v_lshlrev_b32 v34, 4, v34
    v_lshrrev_b32 v35, 1, v3
    v_lshl_add_u32 v34, v35, 3, v34
    s_lshl_b32 s26, s25, 10
    s_add_u32 s26, s26, s24
    v_add_u32 v34, s26, v34
    ds_write_b64 v34, v[28:29]
    v_cmp_eq_u32 vcc, 4, v2
    s_nop 1
    v_cndmask_b32 v30, v30, v36, vcc
    v_cndmask_b32 v31, v31, v36, vcc
    v_cmp_lt_u32 vcc, 4, v2
    s_nop 1
    v_cndmask_b32 v30, v30, 0, vcc
    v_cndmask_b32 v31, v31, 0, vcc
    ds_write_b64 v34, v[30:31] offset:256
    """.replace("v_cndmask_b32 v30, v30, 0, vcc", "v_cndmask_b32_e64 v30, v30, 0, vcc").replace("v_cndmask_b32 v31, v31, 0, vcc", "v_cndmask_b32_e64 v31, v31, 0, vcc"))
    a.label("L_f_kvb")
    a("s_waitcnt lgkmcnt(0)")
    a("s_barrier")
    a(f"s_cmp_eq_u32 s{KH}, 1"); a("s_cbranch_scc0 L_f_kvd")
    a(f"s_cmp_ge_u32 s{W_}, 2"); a("s_cbranch_scc1 L_f_kvd")
    a(f"""
    s_lshl_b32 s24, s{W_}, 11
    s_add_u32 s24, s24, {L_KVI}
    v_lshl_add_u32 v34, v1, 4, s24
    ds_read_b128 v[28:31], v34
    ds_read_b128 v[36:39], v34 offset:1024
    s_lshr_b32 s25, s{ROW0}, 5
    s_add_u32 s25, s25, s{W_}
    s_mul_i32 s24, s25, {KVT}
    s_add_u32 s24, s24, {WS_KV}
    s_mul_i32 s26, s{S_J}, {KV_V0}
    s_add_u32 s24, s24, s26
    v_lshlrev_b32 v34, 4, v1
    s_waitcnt lgkmcnt(0)
    """)
    if os.environ.get('FINE3'): stamp(a, 1)
    a(f"""
    buffer_store_dwordx4 v[28:31], v34, {SWS}, s24 offen sc1
    s_cmp_eq_u32 s{S_J}, 1
    s_cbranch_scc1 L_f_kvs
    s_lshl_b32 s27, s25, 3
    s_add_u32 s27, s27, {WS_KN}
    v_mov_b32 v35, 0
    s_mov_b32 exec_lo, 0
    s_mov_b32 exec_hi, 1
    buffer_store_dwordx2 v[36:37], v35, {SWS}, s27 offen sc1
    s_mov_b32 exec_lo, -1
    s_mov_b32 exec_hi, 0
    """)
    a.label("L_f_kvs")
    a(f"""
    buffer_store_dwordx4 v[36:39], v34, {SWS}, s24 offen offset:1024 sc1
    s_mov_b64 exec, -1
    s_lshl_b32 s27, s25, 8
    s_lshl_b32 s28, s{S_J}, 7
    s_add_u32 s27, s27, s28
    s_add_u32 s37, s27, {WS_KVF}
    s_mov_b32 s38, 1
    """)
    a.label("L_f_kvd")
    def reads(q):
        b = WF[q & 1]
        va, vb = (96, 97) if q < 5 else (92, 93)
        o = (q % 5) * 5120
        for tt, off in enumerate((0, 8, 80, 88)):
            a(f"ds_read_b64_tr_b16 v[{b+4*tt}:{b+4*tt+1}], v{va} offset:{o+off}")
            a(f"ds_read_b64_tr_b16 v[{b+4*tt+2}:{b+4*tt+3}], v{va} offset:{o+off+2560}")
        a(f"ds_read_b64_tr_b16 v[{b+16}:{b+17}], v{vb} offset:{o}")
        a(f"ds_read_b64_tr_b16 v[{b+18}:{b+19}], v{vb} offset:{o+2560}")
    reads(0)
    for q in range(10):
        b = WF[q & 1]; h = XF + 4*q
        if q == 4:
            a("s_waitcnt vmcnt(0)"); a("s_barrier")
        if q + 1 < 10:
            reads(q + 1); a("s_waitcnt lgkmcnt(10)")
        else:
            a("s_waitcnt lgkmcnt(0)")
        for tt in range(5): a(CHN.mf16(ACC + 4*tt, b + 4*tt, h))
        if q == 2:
            a("s_cmp_eq_u32 s38, 1"); a("s_cbranch_scc0 L_f_nofl")
            a(f"""
            v_mov_b32 v98, 0
            v_mov_b32 v99, s{FLAGV}
            """)
            if os.environ.get('FINE3'): stamp(a, 2)
            a(f"""
            s_waitcnt vmcnt(0)
            """)
            if os.environ.get('FINE3'): stamp(a, 3)
            a(f"""
            s_mov_b64 exec, 1
            buffer_store_dword v99, v98, {SWS}, s37 offen sc1
            s_mov_b64 exec, -1
            """)
            a.label("L_f_nofl")
    a("s_barrier")
    a(f"""
    s_mul_i32 s27, s{S_WAVE}, 5120
    v_lshl_add_u32 v6, v1, 4, s27
    s_xor_b32 s28, s{S_WAVE}, 4
    s_mul_i32 s28, s28, 5120
    v_lshl_add_u32 v7, v1, 4, s28
    s_nop 4
    """)
    for t in range(5): a(f"ds_write_b128 v6, v[{ACC+4*t}:{ACC+4*t+3}] offset:{1024*t}")
    a("s_waitcnt lgkmcnt(0)")
    a("s_barrier")
    for t in range(5): a(f"ds_read_b128 v[{100+4*t}:{100+4*t+3}], v7 offset:{1024*t}")
    a("s_waitcnt lgkmcnt(0)")
    for r in range(0, 20, 2): a(f"v_pk_add_f32 v[{ACC+r}:{ACC+r+1}], v[{ACC+r}:{ACC+r+1}], v[{100+r}:{100+r+1}]")
    stamp(a, 9)
    for r in range(20): a(f"v_mul_f32 v{ACC+r}, {hex(f32bits(QSCALE))}, v{ACC+r}")
    QAM, QBM, QAT, QBT = AT.QAM, AT.QBM, AT.QAT, AT.QBT
    for t, d in enumerate((QAM, QAM+2, QBM, QBM+2, QAT)):
        a(f"v_cvt_pk_bf16_f32 v{d}, v{ACC+4*t}, v{ACC+4*t+1}")
        a(f"v_cvt_pk_bf16_f32 v{d+1}, v{ACC+4*t+2}, v{ACC+4*t+3}")
    a(f"v_mov_b32 v{QBT}, v{QAT}"); a(f"v_mov_b32 v{QBT+1}, v{QAT+1}"); a("s_nop 1")
    a(f"v_permlane32_swap_b32 v{QAT}, v{QBT}"); a(f"v_permlane32_swap_b32 v{QAT+1}, v{QBT+1}")
    a("s_mov_b32 exec_lo, 0")
    for r in (QAT, QAT+1, QBT, QBT+1): a(f"v_mov_b32 v{r}, 0")
    a("s_mov_b32 exec_lo, -1")
    stamp(a, 10)
```

```python
from common import *
import common
from k_qkv import lane_ids, f32bits
import k_attn as AT
import k_chain as CHN
import k_front2 as F2
import k_chain2 as C2

W_, KH, ROW0, M_, FLAGV = 75, 76, 77, 78, 79
LOCAL = 100
L_WQ = 0
L_STG = 102400
L_KVW = 126976
L_GA = 152576
L_F = 159744
L_DUMMY = L_F + 2048
KVB = 102400
L_UNS = 145408 + 6144
L_MISC = 145408
L_G16 = L_MISC + 2688
L_S16 = L_MISC + 3968
L_SC = L_MISC + 5248
DBG_NONCE = 128
WS_XC = WS_FLAGS + 14 * 4096
SWS = f"s[{SRD_WS}:{SRD_WS+3}]"

import os
SLEEP = int(os.environ.get('SLEEP', '4'))
def set_exec(a, n):
    if n >= 64: a("s_mov_b64 exec, -1")
    elif n > 32:
        a("s_mov_b32 exec_lo, -1"); a(f"s_mov_b32 exec_hi, {hex((1 << (n-32)) - 1)}")
    else:
        a(f"s_mov_b64 exec, {hex((1 << n) - 1)}")

def poll_generic(a, vaddr, vdata, soff, nregs_check, ndw, lanes_mask=None, srd=SWS, tagreg=FLAGV, extra=''):
    lp = a.new_label('L_pg'); dn = a.new_label('L_pgd')
    if lanes_mask is not None: set_exec(a, lanes_mask)
    a("s_mov_b32 s101, 0x40000")
    a.label(lp)
    suf = {1: 'dword', 2: 'dwordx2', 4: 'dwordx4'}[ndw]
    a(f"buffer_load_{suf} {v(vdata, ndw)}, v{vaddr}, {srd}, {soff} offen sc1 {extra}")
    a("s_waitcnt vmcnt(0)")
    first = True
    for r in nregs_check:
        if first:
            a(f"v_cmp_ne_u32 vcc, s{tagreg}, v{r}"); first = False
        else:
            a(f"v_cmp_ne_u32 s[26:27], s{tagreg}, v{r}"); a("s_or_b64 vcc, vcc, s[26:27]")
    a("s_sub_u32 s101, s101, 1")
    a("s_cmp_eq_u64 vcc, 0")
    a(f"s_cbranch_scc1 {dn}")
    a(f"s_sleep {SLEEP}")
    a("s_cmp_lg_u32 s101, 0")
    a(f"s_cbranch_scc1 {lp}")
    a.label(dn)
    if lanes_mask is not None: a("s_mov_b64 exec, -1")

def front(a):
    SA_, SB_, SC_ = f"s[{SRD_A}:{SRD_A+3}]", f"s[{SRD_B}:{SRD_B+3}]", f"s[{SRD_C}:{SRD_C+3}]"
    a("s_getreg_b32 s4, hwreg(HW_REG_XCC_ID, 0, 4)")
    srd(a, SRD_C, P_DBG)
    srd(a, SRD_A, P_C)
    srd(a, SRD_B, P_WMOD)
    a(f"""
    s_and_b32 s{W_}, s{S_WAVE}, 3
    s_lshr_b32 s{KH}, s{S_WAVE}, 2
    s_lshl_b32 s{ROW0}, s{S_X}, 8
    s_lshl_b32 s24, s{S_B}, 6
    s_add_u32 s{ROW0}, s{ROW0}, s24
    s_lshr_b32 s{M_}, s{ROW0}, 4
    s_add_u32 s{M_}, s{M_}, s{W_}
    """)
    a(f"""
    s_cmp_lg_u32 s2, 0
    s_cbranch_scc1 L_f_non
    s_cmp_lg_u32 s{S_WAVE}, 0
    s_cbranch_scc1 L_f_non
    s_memrealtime s[24:25]
    s_waitcnt lgkmcnt(0)
    s_or_b32 s24, s24, 1
    v_mov_b32 v8, s24
    v_mov_b32 v9, {DBG_NONCE}
    s_mov_b64 exec, 1
    buffer_store_dword v8, v9, {SC_}, 0 offen sc1
    s_mov_b64 exec, -1
    """)
    a.label("L_f_non")
    stamp(a, 1)
    a(f"""
    s_mul_i32 s32, s{S_X}, 20
    s_add_u32 s32, s32, s{S_T}
    s_mul_i32 s26, s{S_X}, 12
    s_add_u32 s26, s26, s{S_T}
    s_add_u32 s26, s26, 140
    s_cmp_lt_u32 s{S_T}, 20
    s_cselect_b32 s32, s32, s26
    s_lshl_b32 s33, s{S_X}, 5
    s_add_u32 s33, s33, s{S_T}
    s_add_u32 s33, s33, 256
    s_lshl_b32 s26, s32, 4
    s_lshl_b32 s27, s33, 4
    s_min_u32 s27, s27, {479*16}
    v_lshlrev_b32 v4, 1, v0
    buffer_load_ushort v24, v4, {SA_}, 0 offen
    buffer_load_ushort v25, v4, {SA_}, 0 offen offset:1024
    v_mul_u32_u24 v4, 7680, v0
    v_add_u32 v5, {512*7680}, v4
    buffer_load_dwordx4 v[8:11], v4, {SB_}, s26 offen
    buffer_load_dwordx4 v[12:15], v5, {SB_}, s26 offen
    buffer_load_dwordx4 v[16:19], v4, {SB_}, s27 offen
    buffer_load_dwordx4 v[20:23], v5, {SB_}, s27 offen
    """)
    a(f"s_cmp_lg_u32 s{S_WAVE}, 0")
    a("s_cbranch_scc1 L_f_np")
    lp = 'L_f_npl'
    a(f"v_mov_b32 v26, {DBG_NONCE}")
    a("s_mov_b32 s101, 0x40000")
    a.label(lp)
    a(f"buffer_load_dword v27, v26, {SC_}, 0 offen sc1")
    a("s_waitcnt vmcnt(0)")
    a(f"v_readfirstlane_b32 s{FLAGV}, v27")
    a("s_sub_u32 s101, s101, 1")
    a(f"s_cmp_lg_u32 s{FLAGV}, 0")
    a("s_cbranch_scc1 L_f_npd")
    a("s_cmp_lg_u32 s101, 0")
    a(f"s_cbranch_scc1 {lp}")
    a.label("L_f_npd")
    a(f"v_mov_b32 v26, {L_F}")
    a(f"v_mov_b32 v27, s{FLAGV}")
    a("ds_write_b32 v26, v27")
    a.label("L_f_np")
    stamp(a, 2)
    srd(a, SRD_A, P_WQ)
    srd(a, SRD_B, P_X)
    for q5 in range(5):
        a(f"v_add_u32 v6, {64*q5}, v1")
        a(f"v_mul_u32_u24 v7, 6554, v6")
        a(f"v_lshrrev_b32 v7, 16, v7")
        a(f"v_mul_u32_u24 v26, 10, v7")
        a(f"v_sub_u32 v6, v6, v26")
        a(f"v_mul_u32_u24 v7, 1280, v7")
        a(f"v_lshl_add_u32 v{44+q5}, v6, 4, v7")
    a(f"s_mul_i32 s34, s{S_J}, 160")
    for i in range(3):
        a(f"s_add_u32 s24, s{S_WAVE}, {8*i}")
        a(f"s_mul_i32 s25, s24, 40960")
        a(f"s_add_u32 s25, s25, s34")
        a(f"s_mul_i32 s26, s24, 5120")
        a(f"s_cmp_lt_u32 s24, 20")
        a(f"s_cselect_b32 s26, s26, {L_DUMMY}")
        a(f"s_cselect_b32 s27, 1024, 0")
        for q5 in range(5):
            a(f"s_mov_b32 m0, s26")
            a(f"s_add_u32 s26, s26, s27")
            a(f"buffer_load_dwordx4 v{44+q5}, {SA_}, s25 offen lds")
    a(f"""
    v_lshrrev_b32 v6, 2, v1
    v_and_b32 v7, 3, v1
    v_bfe_u32 v26, v6, 1, 2
    v_xor_b32 v7, v7, v26
    v_mul_u32_u24 v6, 1280, v6
    v_lshl_add_u32 v49, v7, 4, v6
    s_mul_i32 s35, s{ROW0}, 1280
    """)
    def xdma(nper, i, s0, lbase):
        a(f"s_add_u32 s24, s{S_WAVE}, {8*i}")
        sdivmod(a, 25, 26, 24, nper)
        a(f"s_mul_i32 s25, s25, {16*1280}")
        a(f"s_lshl_b32 s26, s26, 6")
        a(f"s_add_u32 s25, s25, s26")
        a(f"s_add_u32 s25, s25, s35")
        if s0: a(f"s_add_u32 s25, s25, {64*s0}")
        a(f"s_lshl_b32 s24, s24, 10")
        a(f"s_add_u32 m0, s24, {lbase}")
        a("s_nop 0")
        a(f"buffer_load_dwordx4 v49, {SB_}, s25 offen lds")
    for i in range(7): xdma(14, i, 0, L_STG)
    stamp(a, 3)
    a("s_waitcnt vmcnt(22)")
    stamp(a, 4)
    for r in (24, 25): a(f"v_lshlrev_b32 v{r}, 16, v{r}")
    for r, t in ((24, 26), (25, 27)): a(f"v_mul_f32 v{t}, 0xbfb8aa3b, v{r}")
    for t in (26, 27): a(f"v_exp_f32 v{t}, v{t}")
    a("s_nop 0")
    for t in (26, 27): a(f"v_add_f32 v{t}, 1.0, v{t}")
    for t in (26, 27): a(f"v_rcp_f32 v{t}, v{t}")
    a("s_nop 0")
    for r, t in ((24, 26), (25, 27)): a(f"v_mul_f32 v{r}, v{r}, v{t}")
    a("v_cvt_pk_bf16_f32 v26, v24, v25")
    a("v_lshlrev_b32 v24, 16, v26")
    a("v_and_b32 v25, 0xffff0000, v26")
    for jb, (r1, r2, acc) in enumerate(((8, 12, 28), (16, 20, 36))):
        for e in range(4):
            a(f"v_lshlrev_b32 v26, 16, v{r1+e}")
            a(f"v_and_b32 v27, 0xffff0000, v{r1+e}")
            a(f"v_mul_f32 v{acc+2*e}, v24, v26")
            a(f"v_mul_f32 v{acc+2*e+1}, v24, v27")
            a(f"v_lshlrev_b32 v26, 16, v{r2+e}")
            a(f"v_and_b32 v27, 0xffff0000, v{r2+e}")
            a(f"v_fmac_f32 v{acc+2*e}, v25, v26")
            a(f"v_fmac_f32 v{acc+2*e+1}, v25, v27")
    wave_reduce_add_dpp(a, list(range(28, 44)))
    a(f"""
    s_lshl_b32 s28, s{S_WAVE}, 6
    s_add_u32 s28, s28, {L_F + 64}
    v_mov_b32 v6, s28
    v_cmp_eq_u32 vcc, 63, v1
    s_and_saveexec_b64 s[30:31], vcc
    ds_write_b128 v6, v[28:31]
    ds_write_b128 v6, v[32:35] offset:16
    ds_write_b128 v6, v[36:39] offset:32
    ds_write_b128 v6, v[40:43] offset:48
    s_mov_b64 exec, s[30:31]
    s_waitcnt lgkmcnt(0)
    s_barrier
    v_mov_b32 v6, {L_F}
    ds_read_b32 v7, v6
    s_cmp_lg_u32 s{S_WAVE}, 0
    s_cbranch_scc1 L_f_m1
    v_lshlrev_b32 v6, 2, v1
    v_add_u32 v6, {L_F + 64}, v6
    """)
    for w in range(8): a(f"ds_read_b32 v{28+w}, v6 offset:{64*w}")
    a("s_waitcnt lgkmcnt(0)")
    for w in range(1, 8): a(f"v_add_f32 v28, v28, v{28+w}")
    a(f"""
    v_cvt_pk_bf16_f32 v28, v28, v28
    v_lshlrev_b32 v28, 16, v28
    v_mov_b32 v29, s{FLAGV}
    v_and_b32 v6, 7, v1
    v_lshlrev_b32 v6, 3, v6
    s_lshl_b32 s26, s32, 6
    s_lshl_b32 s27, s33, 6
    v_mov_b32 v8, s26
    v_mov_b32 v9, s27
    v_cmp_gt_u32 vcc, 8, v1
    s_nop 1
    v_cndmask_b32 v8, v9, v8, vcc
    v_add_u32 v6, v6, v8
    v_cmp_gt_u32 vcc, {480*64}, v6
    v_cmp_gt_u32 s[26:27], 16, v1
    s_and_b64 vcc, vcc, s[26:27]
    s_and_saveexec_b64 s[30:31], vcc
    s_mov_b32 s34, {WS_MODT}
    buffer_store_dwordx2 v[28:29], v6, {SWS}, s34 offen sc1
    s_mov_b64 exec, s[30:31]
    """)
    a(f"""
    s_and_b32 s26, s{FLAGV}, 0xfffffff0
    s_or_b32 s26, s26, s4
    v_mov_b32 v8, s26
    s_lshl_b32 s26, s{S_X}, 5
    s_add_u32 s26, s26, s{S_T}
    s_lshl_b32 s26, s26, 2
    s_add_u32 s26, s26, {WS_XC}
    v_mov_b32 v9, 0
    s_mov_b64 exec, 1
    buffer_store_dword v8, v9, {SWS}, s26 offen sc1
    s_mov_b64 exec, -1
    """)
    a.label("L_f_m1")
    a("s_waitcnt lgkmcnt(0)")
    a(f"v_readfirstlane_b32 s{FLAGV}, v7")
    a(f"""
    s_cmp_lg_u32 s{S_WAVE}, 1
    s_cbranch_scc1 L_f_z
    v_mov_b32 v8, 0
    v_mov_b32 v9, 0
    v_mov_b32 v10, 0
    v_mov_b32 v11, 0
    v_lshlrev_b32 v6, 4, v1
    s_cmp_ge_u32 s2, 16
    s_cbranch_scc1 L_f_z1
    s_lshl_b32 s26, s2, 10
    s_add_u32 s26, s26, {WS_CV}
    buffer_store_dwordx4 v[8:11], v6, {SWS}, s26 offen sc1
    """)
    a.label("L_f_z1")
    a(f"""
    s_cmp_ge_u32 s2, 80
    s_cbranch_scc1 L_f_z
    s_mul_i32 s26, s2, {PLANE}
    s_add_u32 s26, s26, {WS_G}
    v_and_b32 v6, 7, v1
    v_lshlrev_b32 v6, 4, v6
    v_lshrrev_b32 v7, 3, v1
    v_mul_u32_u24 v7, {2056*16}, v7
    v_add_u32 v6, v6, v7
    s_mov_b64 exec, 0xffff
    buffer_store_dwordx4 v[8:11], v6, {SWS}, s26 offen sc1
    s_mov_b64 exec, -1
    """)
    a.label("L_f_z")
    stamp(a, 5)
    XF = 8
    a(f"""
    v_lshrrev_b32 v4, 1, v3
    v_bfe_u32 v5, v2, 1, 2
    v_xor_b32 v4, v4, v5
    v_lshlrev_b32 v4, 4, v4
    v_lshl_add_u32 v4, v2, 6, v4
    v_and_b32 v5, 1, v3
    v_lshl_add_u32 v4, v5, 3, v4
    s_mul_i32 s24, s{W_}, {14*1024}
    s_mul_i32 s25, s{KH}, {10*1024}
    s_add_u32 s24, s24, s25
    s_add_u32 s24, s24, {L_STG}
    v_add_u32 v4, s24, v4
    v_xor_b32 v5, 32, v4
    s_waitcnt vmcnt(0)
    s_barrier
    """)
    def xread(q, off):
        a(f"ds_read_b64 v[{XF+4*q}:{XF+4*q+1}], v4 offset:{off}")
        a(f"ds_read_b64 v[{XF+4*q+2}:{XF+4*q+3}], v5 offset:{off}")
    for q in range(4): xread(q, 1024*q)
    a(f"s_cmp_eq_u32 s{KH}, 0")
    a("s_cbranch_scc0 L_f_x1")
    for q in range(4, 10): xread(q, 1024*q)
    a.label("L_f_x1")
    a("s_waitcnt lgkmcnt(0)")
    a("s_barrier")
    for i in range(3): xdma(6, i, 14, L_STG)
    a(f"s_cmp_ge_u32 s{S_J}, 2")
    a("s_cbranch_scc1 L_f_nokv")
    a(f"s_cmp_eq_u32 s{S_J}, 0")
    a(f"s_cselect_b32 s{SRD_A}, s{ptr(P_WK)}, s{ptr(P_WV)}")
    a(f"s_cselect_b32 s{SRD_A+1}, s{ptr(P_WK)+1}, s{ptr(P_WV)+1}")
    a(f"s_mov_b32 s{SRD_A+2}, {640*40}")
    a(f"s_mov_b32 s{SRD_A+3}, 0x00020000")
    a("v_lshlrev_b32 v6, 4, v1")
    for i in range(4):
        a(f"s_add_u32 s24, s{S_WAVE}, {8*i}")
        a(f"s_lshl_b32 s25, s24, 10")
        a(f"s_add_u32 s26, s25, {L_KVW}")
        a(f"s_cmp_lt_u32 s24, 25")
        a(f"s_cselect_b32 s26, s26, {L_DUMMY}")
        a(f"s_mov_b32 m0, s26")
        a("s_nop 0")
        a(f"buffer_load_dwordx4 v6, {SA_}, s25 offen lds")
    a.label("L_f_nokv")
    a("s_waitcnt vmcnt(0)")
    a("s_barrier")
    a(f"s_cmp_eq_u32 s{KH}, 1")
    a("s_cbranch_scc0 L_f_x2")
    a(f"s_mul_i32 s24, s{W_}, {14*1024 - 6*1024}")
    a(f"s_add_u32 s24, s24, {10*1024}")
    a("v_subrev_u32 v4, s24, v4")
    a("v_xor_b32 v5, 32, v4")
    for q in range(4, 10): xread(q, 1024*(q-4))
    a("s_waitcnt lgkmcnt(0)")
    a.label("L_f_x2")
    stamp(a, 6)
    a("v_mov_b32 v56, 0"); a("v_mov_b32 v57, 0"); a("v_mov_b32 v58, 0"); a("v_mov_b32 v59, 0")
    a("v_mov_b32 v60, 0x3f803f80")
    for r in range(40):
        a(f"v_dot2c_f32_bf16 v{56 + 2*(r&1)}, v{XF+r}, v60")
        a(f"v_dot2c_f32_bf16 v{57 + 2*(r&1)}, v{XF+r}, v{XF+r}")
    a("s_nop 2")
    a("v_add_f32 v56, v56, v58"); a("v_add_f32 v57, v57, v59")
    reduce_g(a, [56, 57], [58, 59])
    a(f"""
    s_lshl_b32 s27, s{S_WAVE}, 7
    s_add_u32 s27, s27, {L_F + 1024}
    v_lshl_add_u32 v6, v2, 3, s27
    ds_write_b64 v6, v[56:57]
    s_xor_b32 s28, s{S_WAVE}, 4
    s_lshl_b32 s28, s28, 7
    s_add_u32 s28, s28, {L_F + 1024}
    v_lshl_add_u32 v7, v2, 3, s28
    s_waitcnt lgkmcnt(0)
    s_barrier
    ds_read_b64 v[58:59], v7
    s_waitcnt lgkmcnt(0)
    v_add_f32 v56, v56, v58
    v_add_f32 v57, v57, v59
    v_mul_f32 v56, 0x3acccccd, v56
    v_mul_f32 v57, 0x3acccccd, v57
    v_fma_f32 v57, -v56, v56, v57
    v_add_f32 v57, 0x3727c5ac, v57
    v_rsq_f32 v57, v57
    s_nop 0
    v_mul_f32 v56, v56, v57
    v_sub_f32 v56, 0, v56
    """)
    XN = 64
    for r in range(40):
        a(f"v_lshlrev_b32 v{XN+2*r}, 16, v{XF+r}")
        a(f"v_and_b32 v{XN+2*r+1}, 0xffff0000, v{XF+r}")
    for r in range(80):
        a(f"v_fma_f32 v{XN+r}, v{XN+r}, v57, v56")
    stamp(a, 7)
    a(f"""
    s_cmp_ge_u32 s{S_WAVE}, 5
    s_cbranch_scc1 L_f_mp
    v_lshlrev_b32 v6, 4, v0
    """)
    poll_generic(a, 6, 8, f"s28", [9, 11], 4) if False else None
    a(f"s_mov_b32 s28, {WS_MODT}")
    poll_generic(a, 6, 8, "s28", [9, 11], 4)
    a(f"s_mov_b32 s28, {WS_MODT + 640*8}")
    poll_generic(a, 6, 12, "s28", [13, 15], 4)
    a(f"""
    v_add_f32 v12, 1.0, v12
    v_add_f32 v14, 1.0, v14
    v_cvt_pk_bf16_f32 v12, v12, v14
    v_and_b32 v13, 0xffff0000, v12
    v_lshlrev_b32 v12, 16, v12
    v_mov_b32 v9, v10
    v_lshlrev_b32 v6, 3, v0
    v_add_u32 v6, {L_GA}, v6
    ds_write_b64 v6, v[12:13]
    ds_write_b64 v6, v[8:9] offset:2560
    s_waitcnt lgkmcnt(0)
    """)
    a.label("L_f_mp")
    a("s_barrier")
    stamp(a, 8)
    ACC = 144
    WF = (172, 200)
    GSB = (228, 240)
    for r in range(28): a(f"v_mov_b32 v{ACC+r}, 0")
    a(f"""
    v_lshrrev_b32 v6, 2, v2
    v_lshl_add_u32 v6, v3, 2, v6
    v_and_b32 v7, 3, v2
    v_and_b32 v48, 1, v7
    v_mul_u32_u24 v48, 40, v48
    v_lshrrev_b32 v49, 1, v7
    v_lshl_add_u32 v48, v49, 4, v48
    v_mul_u32_u24 v49, 40, v7
    v_add_u32 v49, 32, v49
    v_mul_u32_u24 v50, 160, v6
    s_mul_i32 s24, s{KH}, {10*5120}
    v_add_u32 v50, s24, v50
    v_add_u32 v48, v48, v50
    v_add_u32 v49, v49, v50
    v_mul_u32_u24 v50, 40, v6
    v_lshl_add_u32 v50, v7, 3, v50
    s_mul_i32 s24, s{KH}, {10*1280}
    s_add_u32 s24, s24, {L_KVW}
    v_add_u32 v50, s24, v50
    s_mul_i32 s24, s{KH}, 1280
    s_add_u32 s24, s24, {L_GA}
    v_lshl_add_u32 v51, v3, 4, s24
    """)
    def wread(q, kv):
        b = WF[q & 1]
        o = q * 5120
        for tt, off in enumerate((0, 8, 80, 88)):
            a(f"ds_read_b64_tr_b16 v[{b+4*tt}:{b+4*tt+1}], v48 offset:{o+off}")
            a(f"ds_read_b64_tr_b16 v[{b+4*tt+2}:{b+4*tt+3}], v48 offset:{o+off+2560}")
        a(f"ds_read_b64_tr_b16 v[{b+16}:{b+17}], v49 offset:{o}")
        a(f"ds_read_b64_tr_b16 v[{b+18}:{b+19}], v49 offset:{o+2560}")
        if kv:
            o2 = q * 1280
            for tt in range(2):
                a(f"ds_read_b64_tr_b16 v[{b+20+4*tt}:{b+21+4*tt}], v50 offset:{o2+32*tt}")
                a(f"ds_read_b64_tr_b16 v[{b+22+4*tt}:{b+23+4*tt}], v50 offset:{o2+32*tt+640}")
    def modulate(q):
        gb = 228
        a(f"ds_read_b128 v[{gb}:{gb+3}], v51 offset:{128*q}")
        a(f"ds_read_b128 v[{gb+4}:{gb+7}], v51 offset:{128*q+64}")
        a(f"ds_read_b128 v[{gb+8}:{gb+11}], v51 offset:{128*q+2560}")
        a(f"ds_read_b128 v[{gb+12}:{gb+15}], v51 offset:{128*q+2560+64}")
        a("s_waitcnt lgkmcnt(0)")
        for e in range(8):
            a(f"v_fma_f32 v{XN+8*q+e}, v{XN+8*q+e}, v{gb+e}, v{gb+8+e}")
        for e in range(4):
            a(f"v_cvt_pk_bf16_f32 v{XF+4*q+e}, v{XN+8*q+2*e}, v{XN+8*q+2*e+1}")
    def body(mode):
        for q in range(10):
            wread(q, mode != 0)
            modulate(q)
            b = WF[q & 1]; h = XF + 4*q
            a("s_nop 1")
            for tt in range(5):
                a(CHN.mf16(ACC + 4*tt, b + 4*tt, h))
            if mode == 1:
                for tt in range(2): a(CHN.mf16(ACC + 20 + 4*tt, b + 20 + 4*tt, h))
            elif mode == 2:
                for tt in range(2): a(CHN.mf16(ACC + 20 + 4*tt, h, b + 20 + 4*tt))
    a(f"s_cmp_eq_u32 s{S_J}, 0"); a("s_cbranch_scc1 L_f_gK")
    a(f"s_cmp_eq_u32 s{S_J}, 1"); a("s_cbranch_scc1 L_f_gV")
    body(0); a("s_branch L_f_gE")
    a.label("L_f_gK"); body(1); a("s_branch L_f_gE")
    a.label("L_f_gV"); body(2)
    a.label("L_f_gE")
    a("s_barrier")
    a(f"""
    s_mul_i32 s27, s{S_WAVE}, 7168
    v_lshl_add_u32 v6, v1, 4, s27
    s_xor_b32 s28, s{S_WAVE}, 4
    s_mul_i32 s28, s28, 7168
    v_lshl_add_u32 v7, v1, 4, s28
    s_nop 4
    """)
    for t in range(7): a(f"ds_write_b128 v6, v[{ACC+4*t}:{ACC+4*t+3}] offset:{1024*t}")
    a("s_waitcnt lgkmcnt(0)")
    a("s_barrier")
    for t in range(7): a(f"ds_read_b128 v[{WF[0]+4*t}:{WF[0]+4*t+3}], v7 offset:{1024*t}")
    a("s_waitcnt lgkmcnt(0)")
    for r in range(28): a(f"v_add_f32 v{ACC+r}, v{ACC+r}, v{WF[0]+r}")
    stamp(a, 9)
    a(f"s_cmp_eq_u32 s{KH}, 0"); a("s_cbranch_scc0 L_f_kvd")
    a(f"s_cmp_ge_u32 s{S_J}, 2"); a("s_cbranch_scc1 L_f_kvd")
    A0, A1 = ACC + 20, ACC + 24
    a(f"""
    s_lshr_b32 s24, s{M_}, 1
    s_mul_i32 s24, s24, {KVT}
    s_add_u32 s24, s24, {WS_KV}
    s_and_b32 s25, s{M_}, 1
    v_cvt_pk_bf16_f32 v28, v{A0}, v{A0+1}
    v_cvt_pk_bf16_f32 v29, v{A0+2}, v{A0+3}
    v_cvt_pk_bf16_f32 v30, v{A1}, v{A1+1}
    v_cvt_pk_bf16_f32 v31, v{A1+2}, v{A1+3}
    v_mov_b32 v36, 0x3f803f80
    v_mov_b32 v37, 0x00003f80
    v_mov_b32 v38, 0x7fffffff
    s_cmp_eq_u32 s{S_J}, 1
    s_cbranch_scc1 L_f_v
    """)
    a(f"""
    s_lshl_b32 s26, s25, 4
    v_add_u32 v33, s26, v2
    v_lshrrev_b32 v34, 1, v3
    v_lshl_add_u32 v34, v34, 5, v33
    v_lshlrev_b32 v34, 4, v34
    v_and_b32 v35, 1, v3
    v_lshl_add_u32 v34, v35, 3, v34
    buffer_store_dwordx2 v[28:29], v34, {SWS}, s24 offen sc1
    v_cmp_eq_u32 vcc, 1, v3
    v_lshl_add_u32 v34, v3, 5, v33
    v_lshlrev_b32 v34, 3, v34
    v_cndmask_b32 v30, v30, v36, vcc
    v_cndmask_b32 v31, v31, v37, vcc
    v_cmp_gt_u32 vcc, 2, v3
    v_mul_f32 v32, v{A0}, v{A0}
    v_fmac_f32 v32, v{A0+1}, v{A0+1}
    v_cndmask_b32 v34, v38, v34, vcc
    buffer_store_dwordx2 v[30:31], v34, {SWS}, s24 offen offset:{KV_KT} sc1
    v_fmac_f32 v32, v{A0+2}, v{A0+2}
    v_fmac_f32 v32, v{A0+3}, v{A0+3}
    v_mul_f32 v39, v{A1}, v{A1}
    v_fmac_f32 v39, v{A1+1}, v{A1+1}
    v_fmac_f32 v39, v{A1+2}, v{A1+2}
    v_fmac_f32 v39, v{A1+3}, v{A1+3}
    v_cmp_eq_u32 vcc, 0, v3
    s_nop 1
    v_cndmask_b32 v39, 0, v39, vcc
    v_add_f32 v32, v32, v39
    """)
    reduce_g(a, [32], [40])
    for st_ in (1, 2, 4, 8):
        a("s_nop 1")
        a(f"v_max_f32_dpp v32, v32, v32 row_shr:{st_} row_mask:0xf bank_mask:0xf")
    a(f"""
    s_lshl_b32 s27, s{M_}, 2
    s_add_u32 s27, s27, {WS_KN}
    v_mov_b32 v34, 0
    v_cmp_eq_u32 vcc, 15, v1
    s_and_saveexec_b64 s[30:31], vcc
    buffer_store_dword v32, v34, {SWS}, s27 offen sc1
    s_mov_b64 exec, s[30:31]
    s_mov_b32 s28, 0
    s_branch L_f_kvf
    """)
    a.label("L_f_v")
    a(f"""
    v_and_b32 v34, 1, v3
    v_lshl_add_u32 v34, v34, 5, v2
    v_lshlrev_b32 v34, 4, v34
    v_lshrrev_b32 v35, 1, v3
    v_lshl_add_u32 v34, v35, 3, v34
    s_lshl_b32 s26, s25, 10
    s_add_u32 s26, s26, s24
    buffer_store_dwordx2 v[28:29], v34, {SWS}, s26 offen offset:{KV_V0} sc1
    v_cmp_eq_u32 vcc, 4, v2
    v_add_u32 v34, 256, v34
    s_nop 0
    v_cndmask_b32 v30, v30, v36, vcc
    v_cndmask_b32 v31, v31, v36, vcc
    v_cmp_gt_u32 vcc, 5, v2
    s_nop 1
    v_cndmask_b32 v34, v38, v34, vcc
    buffer_store_dwordx2 v[30:31], v34, {SWS}, s26 offen offset:{KV_V0} sc1
    s_mov_b32 s28, 4
    """)
    a.label("L_f_kvf")
    a(f"""
    s_lshl_b32 s27, s{M_}, 3
    s_add_u32 s27, s27, s28
    s_add_u32 s27, s27, {WS_FLAGS + FL_KV*4096}
    s_waitcnt vmcnt(0)
    v_mov_b32 v34, 0
    v_mov_b32 v35, s{FLAGV}
    s_mov_b64 exec, 1
    buffer_store_dword v35, v34, {SWS}, s27 offen sc1
    s_mov_b64 exec, -1
    """)
    a.label("L_f_kvd")
    for r in range(20): a(f"v_mul_f32 v{ACC+r}, {hex(f32bits(QSCALE))}, v{ACC+r}")
    QAM, QBM, QAT, QBT = AT.QAM, AT.QBM, AT.QAT, AT.QBT
    for t, d in enumerate((QAM, QAM+2, QBM, QBM+2, QAT)):
        a(f"v_cvt_pk_bf16_f32 v{d}, v{ACC+4*t}, v{ACC+4*t+1}")
        a(f"v_cvt_pk_bf16_f32 v{d+1}, v{ACC+4*t+2}, v{ACC+4*t+3}")
    a(f"v_mov_b32 v{QBT}, v{QAT}"); a(f"v_mov_b32 v{QBT+1}, v{QAT+1}"); a("s_nop 1")
    a(f"v_permlane32_swap_b32 v{QAT}, v{QBT}"); a(f"v_permlane32_swap_b32 v{QAT+1}, v{QBT+1}")
    a("s_mov_b32 exec_lo, 0")
    for r in (QAT, QAT+1, QBT, QBT+1): a(f"v_mov_b32 v{r}, 0")
    a("s_mov_b32 exec_lo, -1")
    stamp(a, 10)

def mod2(a):
    a(f"""
    v_mov_b32 v128, 0
    v_mov_b32 v129, {L_SC}
    v_cmp_gt_u32 vcc, 8, v0
    s_and_saveexec_b64 s[30:31], vcc
    v_lshl_add_u32 v129, v0, 2, v129
    ds_write_b32 v129, v128
    s_mov_b64 exec, s[30:31]
    s_waitcnt lgkmcnt(0)
    s_barrier
    s_cmp_ge_u32 s{S_WAVE}, 5
    s_cbranch_scc1 L_m2_b
    v_lshlrev_b32 v128, 4, v0
    s_mov_b32 s28, {WS_MODT + 3*640*8}
    """)
    poll_generic(a, 128, 132, "s28", [133, 135], 4)
    a(f"s_mov_b32 s28, {WS_MODT + 4*640*8}")
    poll_generic(a, 128, 136, "s28", [137, 139], 4)
    a(f"""
    v_add_f32 v136, 1.0, v136
    v_add_f32 v138, 1.0, v138
    v_cvt_pk_bf16_f32 v140, v136, v138
    v_cvt_pk_bf16_f32 v141, v132, v134
    v_lshlrev_b32 v142, 2, v0
    v_add_u32 v142, {L_G16}, v142
    ds_write_b32 v142, v140
    ds_write_b32 v142, v141 offset:1280
    v_lshlrev_b32 v136, 16, v140
    v_and_b32 v137, 0xffff0000, v140
    v_mov_b32 v133, v134
    s_mul_i32 s24, s{S_J}, 40
    v_subrev_u32 v142, s24, v0
    v_cmp_gt_u32 vcc, 40, v142
    v_lshlrev_b32 v142, 3, v142
    v_add_u32 v142, {L_MISC}, v142
    s_and_saveexec_b64 s[30:31], vcc
    ds_write_b64 v142, v[136:137] offset:320
    ds_write_b64 v142, v[132:133] offset:640
    s_mov_b64 exec, s[30:31]
    v_add_f32 v144, v136, v137
    v_mul_f32 v145, v136, v136
    v_fmac_f32 v145, v137, v137
    v_mul_f32 v146, v136, v132
    v_fmac_f32 v146, v137, v133
    v_add_f32 v147, v132, v133
    v_mul_f32 v148, v132, v132
    v_fmac_f32 v148, v133, v133
    """)
    wave_reduce_add_dpp(a, [144, 145, 146, 147, 148])
    a(f"""
    v_mov_b32 v149, {L_SC}
    v_cmp_eq_u32 vcc, 63, v1
    s_and_saveexec_b64 s[30:31], vcc
    ds_add_f32 v149, v144
    ds_add_f32 v149, v145 offset:4
    ds_add_f32 v149, v146 offset:8
    ds_add_f32 v149, v147 offset:12
    ds_add_f32 v149, v148 offset:16
    s_mov_b64 exec, s[30:31]
    s_branch L_m2_e
    """)
    a.label("L_m2_b")
    a(f"""
    s_cmp_eq_u32 s{S_WAVE}, 7
    s_cbranch_scc1 L_m2_e
    s_mul_i32 s24, s{S_J}, 640
    s_cmp_eq_u32 s{S_WAVE}, 5
    s_cselect_b32 s25, {2*640*8}, {5*640*8 & 0xffffffff}
    """.replace(f"s_cselect_b32 s25, {2*640*8}, {5*640*8 & 0xffffffff}", f"s_mov_b32 s25, {5*640*8}\n    s_cselect_b32 s25, {2*640*8}, s25"))
    a(f"""
    s_add_u32 s28, s24, s25
    s_add_u32 s28, s28, {WS_MODT}
    v_lshlrev_b32 v128, 4, v1
    """)
    poll_generic(a, 128, 132, "s28", [133, 135], 4, lanes_mask=40)
    a(f"""
    v_mov_b32 v133, v134
    s_cmp_eq_u32 s{S_WAVE}, 5
    s_cselect_b32 s24, 0, 960
    s_add_u32 s24, s24, {L_MISC}
    v_lshl_add_u32 v142, v1, 3, s24
    s_mov_b32 exec_hi, 0xff
    ds_write_b64 v142, v[132:133]
    s_mov_b64 exec, -1
    """)
    a.label("L_m2_e")
    a("s_waitcnt lgkmcnt(0)")
    a("s_barrier")

P_DST, P_NT, P_JOB, P_KIND = 86, 87, 96, 97
def prep_decode(a):
    GW, Q, R, A_, U = 24, 25, 26, 27, 28
    K0, GS, HS, LD, CB = 32, 33, 34, 35, 36
    SA_ = f"s[{SRD_A}:{SRD_A+3}]"
    a(f"""
    s_lshl_b32 s{GW}, s{S_WAVE}, 8
    s_lshl_b32 s25, s{S_X}, 5
    s_add_u32 s{GW}, s{GW}, s25
    s_add_u32 s{GW}, s{GW}, s{S_T}
    s_mov_b32 s{P_JOB}, s{GW}
    s_cmp_ge_u32 s{GW}, 1232
    s_cbranch_scc1 L_pd_none
    s_mov_b32 s{GS}, 4
    s_mov_b32 s{P_KIND}, 0
    s_mov_b32 s{P_NT}, 5
    s_mov_b32 s{LD}, 1280
    """)
    def pi_params(sreg):
        sdivmod(a, A_, U, sreg, 5)
        lab = a.new_label('L_pi'); lab2 = a.new_label('L_pi')
        a(f"""
        s_cmp_eq_u32 s{U}, 4
        s_cbranch_scc1 {lab}
        s_mul_i32 s{K0}, s{A_}, 160
        s_lshr_b32 s29, s{U}, 1
        s_mul_i32 s29, s29, 80
        s_add_u32 s{K0}, s{K0}, s29
        s_and_b32 s29, s{U}, 1
        s_lshl_b32 s29, s29, 5
        s_add_u32 s{K0}, s{K0}, s29
        s_mov_b32 s{HS}, 16
        s_branch {lab2}
        """)
        a.label(lab)
        a(f"s_mul_i32 s{K0}, s{A_}, 160"); a(f"s_add_u32 s{K0}, s{K0}, 64"); a(f"s_mov_b32 s{HS}, 80")
        a.label(lab2)
    a(f"s_cmp_lt_u32 s{GW}, 160"); a("s_cbranch_scc1 L_pp_wo")
    a(f"s_cmp_lt_u32 s{GW}, 320"); a("s_cbranch_scc1 L_pp_w1")
    a(f"s_cmp_lt_u32 s{GW}, 480"); a("s_cbranch_scc1 L_pp_w2")
    a(f"s_cmp_lt_u32 s{GW}, 800"); a("s_cbranch_scc1 L_pp_w3")
    a(f"s_sub_u32 s{GW}, s{GW}, 800")
    sdivmod(a, Q, R, GW, 54)
    srd(a, SRD_A, P_W4)
    a(f"""
    s_mul_i32 s{CB}, s{Q}, 160
    s_mul_i32 s{P_DST}, s{GW}, 5120
    s_add_u32 s{P_DST}, s{P_DST}, {WS_W4}
    s_cmp_ge_u32 s{R}, 48
    s_cbranch_scc1 L_pp_w4b
    """)
    sdivmod(a, A_, U, R, 3)
    a(f"""
    s_mul_i32 s{K0}, s{A_}, 112
    s_sub_u32 s29, s{A_}, 12
    s_mul_i32 s29, s29, 96
    s_add_u32 s29, s29, 1344
    s_cmp_lt_u32 s{A_}, 12
    s_cselect_b32 s{K0}, s{K0}, s29
    s_lshl_b32 s29, s{U}, 5
    s_add_u32 s{K0}, s{K0}, s29
    s_mov_b32 s{HS}, 16
    s_branch L_pp_go
    """)
    a.label('L_pp_w4b')
    a(f"s_sub_u32 s29, s{R}, 48"); a(f"s_mul_i32 s{K0}, s29, 224"); a(f"s_add_u32 s{K0}, s{K0}, 96"); a(f"s_mov_b32 s{HS}, 112"); a("s_branch L_pp_go")
    a.label('L_pp_wo')
    sdivmod(a, Q, R, GW, 20)
    srd(a, SRD_A, P_WO)
    a(f"""
    s_mul_i32 s{CB}, s{Q}, 160
    s_mul_i32 s{P_DST}, s{GW}, 5120
    s_add_u32 s{P_DST}, s{P_DST}, {WS_WO}
    s_lshl_b32 s{K0}, s{R}, 2
    s_mov_b32 s{P_KIND}, 2
    s_branch L_pp_go
    """)
    for lab, p, ws, base, kind in (('L_pp_w1', P_W1, WS_W1, 160, 1), ('L_pp_w2', P_W2, WS_W2, 320, 0)):
        a.label(lab)
        a(f"s_sub_u32 s{GW}, s{GW}, {base}")
        sdivmod(a, Q, R, GW, 20)
        srd(a, SRD_A, p)
        a(f"s_mul_i32 s{CB}, s{Q}, 160"); a(f"s_mul_i32 s{P_DST}, s{GW}, 5120"); a(f"s_add_u32 s{P_DST}, s{P_DST}, {ws}")
        a(f"s_mov_b32 s{P_KIND}, {kind}")
        pi_params(R)
        a("s_branch L_pp_go")
    a.label('L_pp_w3')
    a(f"s_sub_u32 s{GW}, s{GW}, 480")
    sdivmod(a, Q, R, GW, 20)
    srd(a, SRD_A, P_W3)
    a(f"""
    s_mul_i32 s{CB}, s{Q}, 224
    s_sub_u32 s29, s{Q}, 12
    s_mul_i32 s29, s29, 192
    s_add_u32 s29, s29, {1344*2}
    s_cmp_lt_u32 s{Q}, 12
    s_cselect_b32 s{CB}, s{CB}, s29
    s_mul_i32 s{P_DST}, s{GW}, 7168
    s_add_u32 s{P_DST}, s{P_DST}, {WS_W3}
    s_mov_b32 s{LD}, 3456
    s_mov_b32 s{P_NT}, 7
    s_mov_b32 s{P_KIND}, 3
    """)
    pi_params(R)
    a.label('L_pp_go')
    a(f"s_mov_b32 s88, s{CB}"); a(f"s_mov_b32 s89, s{K0}"); a(f"s_mov_b32 s90, s{HS}")
    T = 160
    a(f"s_mul_i32 s29, s{S_WAVE}, 7168")
    a(f"s_lshl_b32 s30, s{P_NT}, 1")
    a(f"s_movk_i32 s31, 4682"); a(f"s_cmp_eq_u32 s{P_NT}, 5"); a(f"s_cselect_b32 s31, 6554, s31")
    a(f"v_mul_u32_u24 v{T}, s31, v1")
    a(f"v_lshrrev_b32 v{T}, 16, v{T}")
    a(f"v_mul_u32_u24 v{T+1}, s30, v{T}")
    a(f"v_sub_u32 v{T+1}, v1, v{T+1}")
    a(f"v_mul_lo_u32 v{T}, v{T}, s{LD}")
    a(f"v_lshl_add_u32 v{T}, v{T+1}, 4, v{T}")
    a(f"s_lshl_b32 s31, s30, 6")
    a.label('L_pd_none')

def prep_dma(a):
    GW, Q, R, A_, U = 24, 25, 26, 27, 28
    K0, GS, HS, LD, CB = 32, 33, 34, 35, 36
    SA_ = f"s[{SRD_A}:{SRD_A+3}]"
    T = 160
    a(f"s_cmp_ge_u32 s{P_JOB}, 1232"); a("s_cbranch_scc1 L_pp_none")
    a(f"s_mul_i32 s29, s{S_WAVE}, 7168")
    a(f"s_lshl_b32 s31, s{P_NT}, 7")
    a("s_mov_b32 exec_hi, 0xff")
    a(f"s_cmp_eq_u32 s{P_NT}, 5"); a("s_cbranch_scc1 L_pp_ex")
    a("s_mov_b32 exec_hi, 0xffffff")
    a.label("L_pp_ex")
    a("s_mov_b32 s37, 0")
    a.label("L_pp_loop")
    a("s_lshr_b32 s25, s37, 1")
    a("s_and_b32 s26, s37, 1")
    a(f"s_cmp_eq_u32 s{P_KIND}, 2"); a("s_cbranch_scc1 L_pp_om")
    a(f"s_mul_i32 s25, s25, s{GS}")
    a(f"s_mul_i32 s26, s26, s{HS}")
    a("s_add_u32 s25, s25, s26")
    a(f"s_add_u32 s25, s25, s{K0}")
    a("s_branch L_pp_k")
    a.label("L_pp_om")
    a(f"s_add_u32 s25, s25, s{K0}")
    a(f"s_mul_hi_u32 s27, s25, {magic(10)}")
    a("s_mul_i32 s28, s27, 10")
    a("s_sub_u32 s28, s25, s28")
    a("s_mul_i32 s27, s27, 80")
    a("s_cmp_lt_u32 s28, 8"); a("s_cbranch_scc0 L_pp_om2")
    a("s_lshr_b32 s25, s28, 2"); a("s_lshl_b32 s25, s25, 1"); a("s_bfe_u32 s38, s28, 0x10001"); a("s_add_u32 s25, s25, s38")
    a("s_mul_i32 s25, s25, 20"); a("s_and_b32 s38, s28, 1"); a("s_lshl_b32 s38, s38, 2"); a("s_add_u32 s25, s25, s38")
    a("s_lshl_b32 s26, s26, 3"); a("s_add_u32 s25, s25, s26"); a("s_add_u32 s25, s25, s27")
    a("s_branch L_pp_k")
    a.label("L_pp_om2")
    a("s_sub_u32 s28, s28, 8"); a("s_lshl_b32 s26, s26, 1"); a("s_add_u32 s28, s28, s26"); a("s_mul_i32 s28, s28, 20")
    a("s_add_u32 s25, s28, 16"); a("s_add_u32 s25, s25, s27")
    a.label("L_pp_k")
    a(f"s_mul_i32 s25, s25, s{LD}")
    a(f"s_add_u32 s25, s25, s{CB}")
    a("s_mov_b32 m0, s29")
    a("s_add_u32 s29, s29, s31")
    a(f"buffer_load_dwordx4 v{T}, {SA_}, s25 offen lds")
    a("s_add_u32 s37, s37, 1")
    a("s_cmp_lt_u32 s37, 8"); a("s_cbranch_scc1 L_pp_loop")
    a("s_mov_b64 exec, -1")
    a.label('L_pp_none')

def prep_finish(a):
    done = a.new_label('L_pf_done')
    T = 128
    a(f"s_cmp_ge_u32 s{P_JOB}, 1232"); a(f"s_cbranch_scc1 {done}")
    a(f"""
    s_mul_i32 s29, s{S_WAVE}, 7168
    s_lshl_b32 s30, s{P_NT}, 5
    v_lshlrev_b32 v{T}, 3, v3
    v_lshrrev_b32 v{T+1}, 2, v2
    v_add_u32 v{T}, v{T}, v{T+1}
    v_mul_u32_u24 v{T}, s30, v{T}
    v_add_u32 v{T}, s29, v{T}
    v_and_b32 v{T+1}, 3, v2
    v_lshl_add_u32 v{T}, v{T+1}, 3, v{T}
    s_lshl_b32 s31, s30, 2
    v_add_u32 v{T+1}, s31, v{T}
    v_lshlrev_b32 v{T+2}, 4, v1
    """)
    F = 136
    for tt in range(7):
        a(f"ds_read_b64_tr_b16 v[{F+4*tt}:{F+4*tt+1}], v{T} offset:{32*tt}")
        a(f"ds_read_b64_tr_b16 v[{F+4*tt+2}:{F+4*tt+3}], v{T+1} offset:{32*tt}")
    a(f"""
    v_lshlrev_b32 v{T+3}, 3, v3
    s_lshl_b32 s31, s89, 1
    v_add_u32 v{T+3}, s31, v{T+3}
    v_add_u32 v{T+3}, {L_G16}, v{T+3}
    s_lshl_b32 s31, s90, 1
    v_add_u32 v{T+4}, s31, v{T+3}
    ds_read_b64 v[164:165], v{T+3}
    ds_read_b64 v[166:167], v{T+4}
    ds_read_b64 v[168:169], v{T+3} offset:1280
    ds_read_b64 v[170:171], v{T+4} offset:1280
    s_waitcnt lgkmcnt(0)
    """)
    for tt in range(7):
        if tt == 5:
            lab5 = a.new_label('L_pf5')
            a(f"s_cmp_eq_u32 s{P_NT}, 5"); a(f"s_cbranch_scc1 {lab5}")
        a(f"s_add_u32 s31, s{P_DST}, {1024*tt}")
        a(f"buffer_store_dwordx4 v[{F+4*tt}:{F+4*tt+3}], v{T+2}, {SWS}, s31 offen sc1")
    a.label(lab5)
    a(f"s_cmp_eq_u32 s{P_KIND}, 1"); a("s_cbranch_scc1 L_pf_w1")
    a(f"s_cmp_eq_u32 s{P_KIND}, 3"); a(f"s_cbranch_scc0 {done}")
    ones = 172
    a(f"v_mov_b32 v{ones}, 0x3f803f80")
    for tt in range(7):
        a(f"v_mov_b32 v{176+tt}, 0")
    for e in range(4):
        for tt in range(7):
            a(f"v_dot2c_f32_bf16 v{176+tt}, v{F+4*tt+e}, v{ones}")
    a("s_nop 2")
    reduce_g(a, [176+tt for tt in range(7)], [184+tt for tt in range(7)])
    a(f"""
    s_lshl_b32 s31, s88, 1
    s_add_u32 s31, s31, {WS_CV + CV_S3}
    v_lshlrev_b32 v{T}, 2, v2
    s_mov_b64 exec, 0xffff
    """)
    for tt in range(7):
        if tt == 6:
            a(f"s_cmp_ge_u32 s88, {1344*2}"); a("s_cbranch_scc1 L_pf_w3e")
        a(f"buffer_atomic_add_f32 v{176+tt}, v{T}, {SWS}, s31 offen offset:{64*tt}")
    a.label("L_pf_w3e")
    a("s_mov_b64 exec, -1")
    a(f"s_branch {done}")
    a.label("L_pf_w1")
    a(f"v_mov_b32 v{ones}, 0x3f803f80")
    for r in range(15): a(f"v_mov_b32 v{176+r}, 0")
    for e in range(4):
        for tt in range(5):
            a(f"v_dot2c_f32_bf16 v{176+tt}, v{F+4*tt+e}, v{164+e}")
            a(f"v_dot2c_f32_bf16 v{181+tt}, v{F+4*tt+e}, v{168+e}")
            a(f"v_dot2c_f32_bf16 v{186+tt}, v{F+4*tt+e}, v{ones}")
    a("s_nop 2")
    reduce_g(a, [176+r for r in range(15)], [192+r for r in range(15)])
    a(f"""
    s_lshl_b32 s31, s88, 1
    s_add_u32 s31, s31, {WS_CV}
    v_lshlrev_b32 v{T}, 2, v2
    s_mov_b64 exec, 0xffff
    """)
    for vec in range(3):
        a(f"s_add_u32 s30, s31, {2560*vec}")
        for tt in range(5):
            a(f"buffer_atomic_add_f32 v{176+5*vec+tt}, v{T}, {SWS}, s30 offen offset:{64*tt}")
    a("s_mov_b64 exec, -1")
    a.label(done)

def prep_flag(a):
    done = a.new_label('L_pfl')
    a(f"s_cmp_ge_u32 s{P_JOB}, 1232"); a(f"s_cbranch_scc1 {done}")
    a(f"""
    s_lshl_b32 s24, s{P_JOB}, 2
    s_add_u32 s24, s24, {WS_FLAGS + FL_P*4096}
    v_mov_b32 v128, 0
    v_mov_b32 v129, s{FLAGV}
    s_mov_b64 exec, 1
    buffer_store_dword v129, v128, {SWS}, s24 offen sc1
    s_mov_b64 exec, -1
    """)
    if os.environ.get('RB', '1') == '1':
        a("v_lshlrev_b32 v130, 4, v1")
        for tt in range(7):
            if tt == 5:
                a(f"s_cmp_eq_u32 s{P_NT}, 5"); a(f"s_cbranch_scc1 {done}")
            a(f"s_add_u32 s31, s{P_DST}, {1024*tt}")
            a(f"buffer_load_dwordx4 v[{136+4*tt}:{139+4*tt}], v130, {SWS}, s31 offen")
    a.label(done)

LG, LSTEP, LLEFT, LPH, LSL, LN, LW7 = 88, 89, 90, 91, 92, 93, 94
LVA, LVB, LVB25, LVL = 200, 201, 202, 203
def loader_init(a):
    a(f"""
    s_sub_u32 s24, s{S_WAVE}, 4
    s_mul_i32 s{LW7}, s24, 7168
    v_lshlrev_b32 v{LVA}, 4, v1
    v_mov_b32 v{LVB25}, 0x7ffffff0
    s_cmp_eq_u32 s24, 3
    s_cselect_b64 vcc, -1, 0
    v_mov_b32 v{LVL}, v{LVA}
    s_nop 0
    v_cndmask_b32 v{LVB25}, v{LVA}, v{LVB25}, vcc
    v_mov_b32 v{LVB}, v{LVB25}
    s_mul_i32 s{LG}, s{S_J}, 102400
    s_add_u32 s{LG}, s{LG}, {WS_WO}
    s_mov_b32 s{LSTEP}, 25600
    s_mov_b32 s{LLEFT}, 4
    s_mov_b32 s{LPH}, 0
    s_mov_b32 s{LSL}, 0
    """)
def prep_poll(a, first_job_expr_reg, n):
    a(f"s_lshl_b32 s28, s{first_job_expr_reg}, 2")
    a(f"s_add_u32 s28, s28, {WS_FLAGS + FL_P*4096}")
    a("v_lshlrev_b32 v204, 2, v1")
    poll_generic(a, 204, 205, "s28", [205], 1, lanes_mask=n)

def loader_issue(a):
    SLOT = CHN.SLOT
    a(f"s_add_u32 s24, s{LSL}, s{LW7}")
    a(f"s_add_u32 s25, s{LG}, s{LW7}")
    a(f"s_mov_b32 m0, s24")
    a(f"s_add_u32 s26, s25, 4096")
    for q in range(4):
        a(f"buffer_load_dwordx4 v{LVA}, {SWS}, s25 offen offset:{1024*q} lds")
    a(f"s_add_u32 m0, s24, 4096")
    a(f"s_add_u32 s{LG}, s{LG}, s{LSTEP}")
    for q in range(3):
        a(f"buffer_load_dwordx4 v{LVB}, {SWS}, s26 offen offset:{1024*q} lds")
    a(f"s_add_u32 s{LSL}, s{LSL}, {SLOT}")
    a(f"s_cmp_eq_u32 s{LSL}, {5*SLOT}")
    a(f"s_cselect_b32 s{LSL}, 0, s{LSL}")
    lab = a.new_label('L_ld_sw')
    a(f"s_sub_u32 s{LLEFT}, s{LLEFT}, 1")
    a(f"s_cmp_lg_u32 s{LLEFT}, 0")
    a(f"s_cbranch_scc1 {lab}")
    a(f"s_add_u32 s{LPH}, s{LPH}, 1")
    l1, l2, l3, l4 = (a.new_label('L_ld_p') for _ in range(4))
    a(f"s_cmp_eq_u32 s{LPH}, 1"); a(f"s_cbranch_scc1 {l1}")
    a(f"s_cmp_eq_u32 s{LPH}, 2"); a(f"s_cbranch_scc1 {l2}")
    a(f"s_cmp_eq_u32 s{LPH}, 3"); a(f"s_cbranch_scc1 {l3}")
    a(f"s_cmp_eq_u32 s{LPH}, 4"); a(f"s_cbranch_scc1 {l4}")
    a(f"v_mov_b32 v{LVA}, 0x7ffffff0"); a(f"v_mov_b32 v{LVB}, 0x7ffffff0"); a(f"s_mov_b32 s{LLEFT}, 100"); a(f"s_mov_b32 s{LSTEP}, 0"); a(f"s_branch {lab}")
    for l, ws, j0 in ((l1, WS_W1, 160), (l2, WS_W2, 320)):
        a.label(l)
        a(f"s_mul_i32 s{LG}, s{S_J}, 102400"); a(f"s_add_u32 s{LG}, s{LG}, {ws}"); a(f"s_mov_b32 s{LLEFT}, 4"); a(f"s_branch {lab}")
    a.label(l3)
    a(f"s_and_b32 s24, s{S_T}, 15"); a(f"s_mul_i32 s{LG}, s24, 143360"); a(f"s_add_u32 s{LG}, s{LG}, {WS_W3}")
    a(f"s_mov_b32 s{LSTEP}, 28672"); a(f"s_mov_b32 s{LLEFT}, 5"); a(f"v_mov_b32 v{LVB}, v{LVL}"); a(f"s_branch {lab}")
    a.label(l4)
    a(f"s_mul_i32 s{LG}, s{S_J}, 276480"); a(f"s_add_u32 s{LG}, s{LG}, {WS_W4}")
    a(f"s_mov_b32 s{LSTEP}, 25600"); a(f"s_mov_b32 s{LLEFT}, 11"); a(f"v_mov_b32 v{LVB}, v{LVB25}")
    a.label(lab)

def check_or_poll(a, regs, reload_fn):
    lp = a.new_label('L_cp'); dn = a.new_label('L_cpd')
    a("s_mov_b32 s101, 0x40000")
    a.label(lp)
    first = True
    for r in regs:
        if first:
            a(f"v_cmp_ne_u32 vcc, s{FLAGV}, v{r}"); first = False
        else:
            a(f"v_cmp_ne_u32 s[26:27], s{FLAGV}, v{r}"); a("s_or_b64 vcc, vcc, s[26:27]")
    a("s_sub_u32 s101, s101, 1")
    a("s_cmp_eq_u64 vcc, 0")
    a(f"s_cbranch_scc1 {dn}")
    a("s_cmp_eq_u32 s101, 0")
    a(f"s_cbranch_scc1 {dn}")
    a("s_sleep 4")
    reload_fn()
    a("s_waitcnt vmcnt(0)")
    a(f"s_branch {lp}")
    a.label(dn)

def mod2_loads(a):
    l1 = a.new_label('L_m2l'); l2 = a.new_label('L_m2l')
    a(f"s_cmp_ge_u32 s{S_WAVE}, 5"); a(f"s_cbranch_scc1 {l1}")
    a(f"v_lshlrev_b32 v128, 4, v0")
    a(f"s_mov_b32 s28, {WS_MODT + 3*640*8}")
    a(f"buffer_load_dwordx4 v[132:135], v128, {SWS}, s28 offen sc1")
    a(f"s_mov_b32 s28, {WS_MODT + 4*640*8}")
    a(f"buffer_load_dwordx4 v[136:139], v128, {SWS}, s28 offen sc1")
    a(f"s_branch {l2}")
    a.label(l1)
    a(f"s_cmp_eq_u32 s{S_WAVE}, 7"); a(f"s_cbranch_scc1 {l2}")
    a(f"s_mul_i32 s24, s{S_J}, 640")
    a(f"s_mov_b32 s25, {5*640*8}")
    a(f"s_cmp_eq_u32 s{S_WAVE}, 5")
    a(f"s_cselect_b32 s25, {2*640*8}, s25")
    a(f"s_add_u32 s28, s24, s25")
    a(f"s_add_u32 s28, s28, {WS_MODT}")
    a(f"v_lshlrev_b32 v128, 4, v1")
    a("s_mov_b32 exec_hi, 0xff")
    a(f"buffer_load_dwordx4 v[132:135], v128, {SWS}, s28 offen sc1")
    a("s_mov_b32 exec_hi, -1")
    a.label(l2)

def mod2_zero(a):
    a(f"""
    v_mov_b32 v140, 0
    v_lshlrev_b32 v141, 2, v1
    v_add_u32 v141, {L_SC}, v141
    s_mov_b64 exec, 0xff
    ds_write_b32 v141, v140
    s_mov_b64 exec, -1
    """)

def mod2_use(a):
    lb = a.new_label('L_m2b'); le = a.new_label('L_m2e')
    a(f"s_cmp_ge_u32 s{S_WAVE}, 5"); a(f"s_cbranch_scc1 {lb}")
    check_or_poll(a, [133, 135, 137, 139], lambda: mod2_loads(a))
    a(f"""
    v_add_f32 v136, 1.0, v136
    v_add_f32 v138, 1.0, v138
    v_cvt_pk_bf16_f32 v140, v136, v138
    v_cvt_pk_bf16_f32 v141, v132, v134
    v_lshlrev_b32 v142, 2, v0
    v_add_u32 v142, {L_G16}, v142
    ds_write_b32 v142, v140
    ds_write_b32 v142, v141 offset:1280
    v_lshlrev_b32 v136, 16, v140
    v_and_b32 v137, 0xffff0000, v140
    v_mov_b32 v133, v134
    s_mul_i32 s24, s{S_J}, 40
    v_subrev_u32 v142, s24, v0
    v_cmp_gt_u32 vcc, 40, v142
    v_lshlrev_b32 v142, 3, v142
    v_add_u32 v142, {L_MISC}, v142
    s_and_saveexec_b64 s[30:31], vcc
    ds_write_b64 v142, v[136:137] offset:320
    ds_write_b64 v142, v[132:133] offset:640
    s_mov_b64 exec, s[30:31]
    v_add_f32 v144, v136, v137
    v_mul_f32 v145, v136, v136
    v_fmac_f32 v145, v137, v137
    v_mul_f32 v146, v136, v132
    v_fmac_f32 v146, v137, v133
    v_add_f32 v147, v132, v133
    v_mul_f32 v148, v132, v132
    v_fmac_f32 v148, v133, v133
    """)
    wave_reduce_add_dpp(a, [144, 145, 146, 147, 148])
    a(f"""
    v_mov_b32 v149, {L_SC}
    v_cmp_eq_u32 vcc, 63, v1
    s_and_saveexec_b64 s[30:31], vcc
    ds_add_f32 v149, v144
    ds_add_f32 v149, v145 offset:4
    ds_add_f32 v149, v146 offset:8
    ds_add_f32 v149, v147 offset:12
    ds_add_f32 v149, v148 offset:16
    s_mov_b64 exec, s[30:31]
    s_branch {le}
    """)
    a.label(lb)
    a(f"s_cmp_eq_u32 s{S_WAVE}, 7"); a(f"s_cbranch_scc1 {le}")
    a("s_mov_b32 exec_hi, 0xff")
    check_or_poll(a, [133, 135], lambda: (mod2_loads(a), a("s_mov_b32 exec_hi, 0xff")))
    a(f"""
    v_mov_b32 v133, v134
    s_cmp_eq_u32 s{S_WAVE}, 5
    s_cselect_b32 s24, 0, 960
    s_add_u32 s24, s24, {L_MISC}
    v_lshl_add_u32 v142, v1, 3, s24
    ds_write_b64 v142, v[132:133]
    s_mov_b64 exec, -1
    """)
    a.label(le)

def pflag_loads(a):
    base = WS_FLAGS + FL_P*4096
    a(f"""
    v_mul_u32_u24 v153, 3277, v1
    v_lshrrev_b32 v153, 16, v153
    v_mul_u32_u24 v154, 20, v153
    v_sub_u32 v154, v1, v154
    v_mul_u32_u24 v153, 160, v153
    v_add_u32 v153, v153, v154
    s_mul_i32 s24, s{S_J}, 20
    v_add_u32 v153, s24, v153
    v_lshlrev_b32 v153, 2, v153
    s_mov_b32 s28, {base}
    v_mov_b32 v150, s{FLAGV}
    v_mov_b32 v151, s{FLAGV}
    v_mov_b32 v152, s{FLAGV}
    v_lshlrev_b32 v154, 2, v1
    s_mov_b32 exec_hi, 0x0fffffff
    buffer_load_dword v150, v153, {SWS}, s28 offen sc1
    s_and_b32 s24, s{S_T}, 15
    s_mul_i32 s24, s24, 80
    s_add_u32 s24, s24, {base + 480*4}
    s_mov_b64 exec, 0xfffff
    buffer_load_dword v151, v154, {SWS}, s24 offen sc1
    s_mul_i32 s24, s{S_J}, {54*4}
    s_add_u32 s24, s24, {base + 800*4}
    s_mov_b32 exec_lo, -1
    s_mov_b32 exec_hi, 0x3fffff
    buffer_load_dword v152, v154, {SWS}, s24 offen sc1
    s_mov_b64 exec, -1
    """)

def cv_loads(a):
    lab = a.new_label('L_lcv')
    a(f"s_cmp_lg_u32 s{S_WAVE}, 4"); a(f"s_cbranch_scc1 {lab}")
    a(f"""
    s_mul_i32 s24, s{S_J}, 320
    v_lshlrev_b32 v204, 4, v1
    s_mov_b64 exec, {hex((1 << 20) - 1)}
    s_add_u32 s25, s24, {WS_CV + CV_G}
    buffer_load_dwordx4 v[208:211], v204, {SWS}, s25 offen sc1
    s_add_u32 s25, s24, {WS_CV + CV_B}
    buffer_load_dwordx4 v[212:215], v204, {SWS}, s25 offen sc1
    s_add_u32 s25, s24, {WS_CV + CV_C}
    buffer_load_dwordx4 v[216:219], v204, {SWS}, s25 offen sc1
    s_and_b32 s24, s{S_T}, 15
    s_mul_i32 s25, s24, 448
    s_sub_u32 s26, s24, 12
    s_mul_i32 s26, s26, 384
    s_add_u32 s26, s26, {1344*4}
    s_cmp_lt_u32 s24, 12
    s_cselect_b32 s25, s25, s26
    s_add_u32 s25, s25, {WS_CV + CV_S3}
    s_mov_b64 exec, {hex((1 << 28) - 1)}
    buffer_load_dwordx4 v[220:223], v204, {SWS}, s25 offen sc1
    s_mov_b64 exec, -1
    """)
    a.label(lab)
def cv_store(a):
    lab = a.new_label('L_scv')
    a(f"s_cmp_lg_u32 s{S_WAVE}, 4"); a(f"s_cbranch_scc1 {lab}")
    a(f"""
    v_add_u32 v204, {CHN.L_CV}, v204
    s_mov_b64 exec, {hex((1 << 20) - 1)}
    ds_write_b128 v204, v[208:211]
    ds_write_b128 v204, v[212:215] offset:320
    ds_write_b128 v204, v[216:219] offset:640
    s_mov_b64 exec, {hex((1 << 28) - 1)}
    ds_write_b128 v204, v[220:223] offset:960
    s_mov_b64 exec, -1
    """)
    a.label(lab)

def census_load(a):
    a(f"""
    s_lshl_b32 s28, s{S_X}, 7
    s_add_u32 s28, s28, {WS_XC}
    v_lshlrev_b32 v128, 2, v1
    s_mov_b64 exec, 0xffffffff
    buffer_load_dword v129, v128, {SWS}, s28 offen sc1
    s_mov_b64 exec, -1
    """)
def census_use(a):
    a(f"""
    s_and_b32 s24, s{FLAGV}, 0xfffffff0
    s_or_b32 s24, s24, s4
    s_mov_b64 exec, 0xffffffff
    v_cmp_ne_u32 vcc, s24, v129
    s_mov_b64 exec, -1
    s_cmp_eq_u64 vcc, 0
    s_cselect_b32 s{LOCAL}, 1, 0
    """)
    if os.environ.get('FORCE_NONLOCAL'): a(f"s_mov_b32 s{LOCAL}, 0")

def xtile_load(a):
    srd(a, SRD_B, P_X)
    a(f"""
    s_lshl_b32 s24, s{M_}, 4
    v_add_u32 v0, s24, v2
    v_mul_u32_u24 v0, 1280, v0
    v_lshl_add_u32 v0, v3, 3, v0
    s_mul_i32 s24, s{S_J}, 160
    """)
    for t in range(5):
        a(f"buffer_load_dwordx2 v[{208+2*t}:{208+2*t+1}], v0, s[{SRD_B}:{SRD_B+3}], s24 offen offset:{32*t}")

def load_cv(a):
    lab = a.new_label('L_lcv')
    a(f"s_cmp_lg_u32 s{S_WAVE}, 4"); a(f"s_cbranch_scc1 {lab}")
    a(f"""
    s_mul_i32 s24, s{S_J}, 320
    v_lshlrev_b32 v204, 4, v1
    s_mov_b64 exec, {hex((1 << 20) - 1)}
    s_add_u32 s25, s24, {WS_CV + CV_G}
    buffer_load_dwordx4 v[208:211], v204, {SWS}, s25 offen sc1
    s_add_u32 s25, s24, {WS_CV + CV_B}
    buffer_load_dwordx4 v[212:215], v204, {SWS}, s25 offen sc1
    s_add_u32 s25, s24, {WS_CV + CV_C}
    buffer_load_dwordx4 v[216:219], v204, {SWS}, s25 offen sc1
    s_waitcnt vmcnt(0)
    v_add_u32 v204, {CHN.L_CV}, v204
    ds_write_b128 v204, v[208:211]
    ds_write_b128 v204, v[212:215] offset:320
    ds_write_b128 v204, v[216:219] offset:640
    s_waitcnt lgkmcnt(0)
    s_mov_b64 exec, -1
    """)
    a.label(lab)
def load_s3(a):
    lab = a.new_label('L_ls3')
    a(f"s_cmp_lg_u32 s{S_WAVE}, 4"); a(f"s_cbranch_scc1 {lab}")
    a(f"""
    s_and_b32 s24, s{S_T}, 15
    s_mul_i32 s25, s24, 448
    s_sub_u32 s26, s24, 12
    s_mul_i32 s26, s26, 384
    s_add_u32 s26, s26, {1344*4}
    s_cmp_lt_u32 s24, 12
    s_cselect_b32 s25, s25, s26
    s_add_u32 s25, s25, {WS_CV + CV_S3}
    v_lshlrev_b32 v204, 4, v1
    s_mov_b64 exec, {hex((1 << 28) - 1)}
    buffer_load_dwordx4 v[208:211], v204, {SWS}, s25 offen sc1
    s_waitcnt vmcnt(0)
    v_add_u32 v204, {CHN.L_S3}, v204
    ds_write_b128 v204, v[208:211]
    s_waitcnt lgkmcnt(0)
    s_mov_b64 exec, -1
    """)
    a.label(lab)

def census(a):
    a(f"""
    s_lshl_b32 s28, s{S_X}, 7
    s_add_u32 s28, s28, {WS_XC}
    s_and_b32 s24, s{FLAGV}, 0xfffffff0
    v_lshlrev_b32 v128, 2, v1
    s_mov_b64 exec, 0xffffffff
    s_mov_b32 s101, 0x40000
    """)
    lp = a.new_label('L_cs'); dn = a.new_label('L_csd')
    a.label(lp)
    a(f"""
    buffer_load_dword v129, v128, {SWS}, s28 offen sc1
    s_waitcnt vmcnt(0)
    v_and_b32 v130, 0xfffffff0, v129
    v_cmp_ne_u32 vcc, s24, v130
    s_sub_u32 s101, s101, 1
    s_cmp_eq_u64 vcc, 0
    s_cbranch_scc1 {dn}
    s_cmp_lg_u32 s101, 0
    s_cbranch_scc1 {lp}
    """)
    a.label(dn)
    a(f"""
    s_or_b32 s24, s24, s4
    v_cmp_ne_u32 vcc, s24, v129
    s_cmp_eq_u64 vcc, 0
    s_cselect_b32 s{LOCAL}, 1, 0
    s_mov_b64 exec, -1
    """)
    import os
    if os.environ.get('FORCE_NONLOCAL'): a(f"s_mov_b32 s{LOCAL}, 0")

HOOKS = {0: 'a', 1: 'b', 6: 'p', 7: 'q', 8: 'r', 9: 'j', 10: 'e', 11: 'f', 12: 'g', 13: 'h', 14: 'i'}
def attn_hook(a, buf):
    S_CH = AT.S_CH
    def dyn_stamp(reg):
        if not common.STAMP or not os.environ.get('DYN'): return
        a("s_memrealtime s[98:99]"); a("s_waitcnt lgkmcnt(0)")
        a("v_mov_b32 v251, s98"); a(f"v_cmp_eq_u32 vcc, s{S_CH}, v1"); a("s_nop 1"); a(f"v_cndmask_b32 v{reg}, v{reg}, v251, vcc")
    dyn_stamp(252)
    a(f"s_bitcmp1_b32 s81, s{S_CH}")
    a(f"s_cbranch_scc0 L_hk_ret{buf}")
    a(f"s_mov_b32 s39, {buf}")
    a("s_branch L_hk_entry")
    a.label(f"L_hk_ret{buf}")
    dyn_stamp(253)

def hook_ret(a):
    a("s_branch L_hk_exit")

def wait_lt5(a):
    lab = a.new_label('L_w5')
    a(f"s_cmp_lt_u32 s{S_WAVE}, 5"); a(f"s_cbranch_scc0 {lab}")
    a("s_waitcnt vmcnt(0)")
    a.label(lab)

def attn_hook_bodies(a):
    S_CH = AT.S_CH
    def wo_part(n):
        C2.dma_run(a, n, 88, 89, C2.LVA)
    a.label("L_hk_entry")
    a(f"s_sub_u32 s24, s{S_CH}, s{S_WAVE}")
    a("s_cmp_eq_u32 s24, 0"); a("s_cbranch_scc1 L_hp_dma")
    a("s_cmp_eq_u32 s24, 3"); a("s_cbranch_scc1 L_hp_fin")
    a("s_cmp_eq_u32 s24, 5"); a("s_cbranch_scc1 L_hp_flg")
    a.label("L_hp_ret")
    for b, nm in HOOKS.items():
        a(f"s_cmp_eq_u32 s{S_CH}, {b}"); a(f"s_cbranch_scc1 L_hk_{nm}")
    a.label("L_hk_exit")
    a("s_cmp_eq_u32 s39, 0"); a("s_cbranch_scc1 L_hk_ret0")
    a("s_cmp_eq_u32 s39, 1"); a("s_cbranch_scc1 L_hk_ret1")
    a("s_branch L_hk_ret2")
    a.label("L_hp_dma"); prep_dma(a); a("s_branch L_hp_ret")
    a.label("L_hp_fin"); wait_lt5(a); prep_finish(a); a("s_branch L_hp_ret")
    a.label("L_hp_flg"); wait_lt5(a); prep_flag(a); a("s_branch L_hp_ret")
    X = "s_branch L_hk_exit"
    a.label("L_hk_a"); mod2_loads(a); mod2_zero(a); a(X)
    a.label("L_hk_b")
    lb = a.new_label('L_hb'); lb2 = a.new_label('L_hb')
    a(f"s_cmp_lt_u32 s{S_WAVE}, 5"); a(f"s_cbranch_scc1 {lb}")
    a("s_waitcnt vmcnt(5)"); a(f"s_branch {lb2}")
    a.label(lb); a("s_waitcnt vmcnt(0)")
    a.label(lb2)
    mod2_use(a); a(X)
    def prewrite(ws_off, plane0_sreg, nplanes, mreg, rts):
        for q in range((nplanes + 3) // 4):
            n = min(4, nplanes - 4*q)
            for rt in range(rts):
                a(f"s_add_u32 s25, s{plane0_sreg}, {4*q}")
                a(f"s_mul_i32 s25, s25, {PLANE}")
                a(f"s_lshl_b32 s26, s{mreg}, 8")
                a("s_add_u32 s25, s25, s26")
                a(f"s_add_u32 s25, s25, {ws_off + GUARD*16 + 256*rt}")
                if n < 4: a(f"s_mov_b64 exec, {hex((1 << (16*n)) - 1)}")
                a(f"buffer_store_dwordx4 v[204:207], v203, {SWS}, s25 offen sc1")
                if n < 4: a("s_mov_b64 exec, -1")
    def pw_setup():
        a(f"v_mul_u32_u24 v203, {PLANE}, v3"); a("v_lshl_add_u32 v203, v2, 4, v203")
        for r in range(4): a(f"v_mov_b32 v{204+r}, 0")
    for nm, buf in (('p', 0), ('q', 1), ('r', 0)):
        a.label(f"L_hk_{nm}")
        a(f"s_cmp_eq_u32 s{KH}, 0"); a("s_cbranch_scc0 L_hk_exit")
        if C2.PREW:
            pw_setup()
            if nm == 'p':
                a(f"s_mul_i32 s27, s{S_J}, 10"); prewrite(WS_O, 27, 10, M_, 1)
                a(f"s_lshr_b32 s27, s{S_J}, 1"); a("s_mul_i32 s27, s27, 20"); a(f"s_and_b32 s28, s{S_J}, 1"); a("s_lshl_b32 s28, s28, 3"); a("s_add_u32 s27, s27, s28")
                prewrite(WS_Z, 27, 8, M_, 1)
            else:
                a(f"""
                s_lshl_b32 s92, s{S_X}, 4
                s_lshr_b32 s24, s{S_T}, 4
                s_lshl_b32 s24, s24, 3
                s_add_u32 s92, s92, s24
                s_lshl_b32 s24, s{W_}, 1
                s_add_u32 s92, s92, s24
                s_and_b32 s27, s{S_T}, 15
                s_mul_i32 s27, s27, 12
                """)
                if nm == 'r': a("s_add_u32 s27, s27, 8")
                prewrite(WS_U, 27, 8 if nm == 'q' else 4, 92, 2)
        a(X)
    a.label("L_hk_j")
    a(f"s_cmp_eq_u32 s{KH}, 0"); a("s_cbranch_scc0 L_hk_exit")
    census_load(a); xtile_load(a); a(X)
    a.label("L_hk_e")
    a(f"s_cmp_gt_u32 s{S_WAVE}, 4"); a("s_cbranch_scc1 L_hk_exit")
    pflag_loads(a); a(X)
    a.label("L_hk_f")
    a(f"s_cmp_gt_u32 s{S_WAVE}, 4"); a("s_cbranch_scc1 L_hk_exit")
    a("s_waitcnt vmcnt(0)")
    check_or_poll(a, [150, 151, 152], lambda: pflag_loads(a))
    a(f"s_cmp_eq_u32 s{KH}, 0"); a("s_cbranch_scc1 L_hk_f0")
    cv_loads(a); a(X)
    a.label("L_hk_f0")
    census_use(a)
    a(f"v_lshlrev_b32 v{C2.LVA}, 4, v1")
    a(f"s_mul_i32 s88, s{S_J}, 102400"); a(f"s_add_u32 s88, s88, {WS_WO}")
    a(f"s_mul_i32 s89, s{W_}, 25600"); a("s_add_u32 s88, s88, s89")
    wo_part(7); a(X)
    a.label("L_hk_g")
    a(f"s_cmp_eq_u32 s{KH}, 0"); a("s_cbranch_scc1 L_hk_g0")
    a(f"s_cmp_lg_u32 s{S_WAVE}, 4"); a("s_cbranch_scc1 L_hk_exit")
    a("s_waitcnt vmcnt(0)"); cv_store(a); a(X)
    a.label("L_hk_g0"); wo_part(6); a(X)
    for nm in ('h', 'i'):
        a.label(f"L_hk_{nm}")
        a(f"s_cmp_eq_u32 s{KH}, 0"); a("s_cbranch_scc0 L_hk_exit")
        wo_part(6); a(X)

_issue_emitted = [False]
def loader_issue_call(a):
    a("s_mov_b32 s95, 0")
    a("s_branch L_ld_issue")
    a.label("L_ld_ret0")

def gen_fused(a, name):
    header(a, name)
    END = 'L_end'
    if common.STAMP: a("v_mov_b32 v255, 0")
    stamp(a, 0)
    prologue(a, end_label=END)
    lane_ids(a)
    if os.environ.get('CODEPF', '1') == '1':
        lab = a.new_label('L_cpf')
        a(f"s_cmp_lg_u32 s{S_WAVE}, 6"); a(f"s_cbranch_scc1 {lab}")
        a("s_getpc_b64 s[24:25]")
        a.label("L_cpf_pc")
        a("s_mov_b32 s26, L_end-L_cpf_pc")
        a("v_lshlrev_b32 v10, 7, v1")
        a("v_mov_b32 v9, s25")
        a("v_add_co_u32 v8, vcc, s24, v10")
        a("s_nop 1")
        a("v_addc_co_u32 v9, vcc, 0, v9, vcc")
        for q in range(6):
            a("v_cmp_gt_u32 vcc, s26, v10")
            a("s_and_saveexec_b64 s[30:31], vcc")
            lq = a.new_label('L_cpq')
            a(f"s_cbranch_execz {lq}")
            a(f"global_load_dword v{230+q}, v[8:9], off")
            a.label(lq)
            a("s_mov_b64 exec, s[30:31]")
            a("v_add_u32 v10, 0x2000, v10")
            a("v_add_co_u32 v8, vcc, 0x2000, v8")
            a("s_nop 1")
            a("v_addc_co_u32 v9, vcc, 0, v9, vcc")
        a.label(lab)
    F2.front(a, poll_generic)
    SC_ = SWS
    V_DMA, V_AK, V_AT = AT.V_DMA, AT.V_AK, AT.V_AT
    a(f"""
    v_lshlrev_b32 v{V_DMA}, 4, v1
    v_lshlrev_b32 v7, 3, v1
    s_mul_i32 s24, s{KH}, {2*KVT}
    s_add_u32 s24, s24, {KVB}
    v_add_u32 v{V_AK}, s24, v{V_DMA}
    s_add_u32 s24, s24, {KV_KT}
    v_add_u32 v{V_AT}, s24, v7
    s_sub_u32 s84, s{S_WAVE}, 5
    s_lshl_b32 s84, s84, 10
    s_add_u32 s85, s84, 12288
    s_min_u32 s85, s85, {13*1024}
    """)
    stamp(a, 11)
    stamp(a, 12)
    prep_decode(a)
    a(f"s_cmp_lg_u32 s{S_WAVE}, 7"); a("s_cbranch_scc1 L_kvw")
    a(f"s_mov_b32 s28, {WS_KVF}")
    a("v_lshlrev_b32 v22, 8, v1")
    lp = a.new_label('L_kvp'); dn = a.new_label('L_kvpd')
    a("s_mov_b32 s101, 0x40000")
    a.label(lp)
    a(f"buffer_load_dword v20, v22, {SWS}, s28 offen sc1")
    a(f"buffer_load_dword v21, v22, {SWS}, s28 offen offset:128 sc1")
    a("s_waitcnt vmcnt(0)")
    a(f"v_cmp_ne_u32 vcc, s{FLAGV}, v20")
    a(f"v_cmp_ne_u32 s[26:27], s{FLAGV}, v21")
    a("s_or_b64 vcc, vcc, s[26:27]")
    a("s_sub_u32 s101, s101, 1")
    a("s_cmp_eq_u64 vcc, 0")
    a(f"s_cbranch_scc1 {dn}")
    a(f"s_sleep {SLEEP}")
    a("s_cmp_lg_u32 s101, 0")
    a(f"s_cbranch_scc1 {lp}")
    a.label(dn)
    a.label("L_kvw")
    a("s_barrier")
    stamp(a, 13)
    a(f"s_cmp_lt_u32 s{S_WAVE}, 5"); a("s_cbranch_scc1 L_kv0")
    a(f"s_add_u32 s82, s84, {WS_KV}")
    AT.kv_dma5(a, 0, KVB); AT.kv_dma5(a, 1, KVB); AT.kv_dma5(a, 2, KVB)
    a.label("L_kv0")
    QAM, QBM, QAT, QBT = AT.QAM, AT.QBM, AT.QAT, AT.QBT
    a(f"""
    v_lshlrev_b32 v20, 3, v1
    s_mov_b32 s27, {WS_KN}
    buffer_load_dwordx2 v[22:23], v20, {SWS}, s27 offen sc1
    v_mov_b32 v25, 0
    v_mov_b32 v26, 0
    v_mov_b32 v27, 0
    """)
    for r in range(4):
        a(f"v_dot2c_f32_bf16 v25, v{QAM+r}, v{QAM+r}")
        a(f"v_dot2c_f32_bf16 v26, v{QBM+r}, v{QBM+r}")
    for r in range(4): a(f"v_dot2c_f32_bf16 v27, v{QAT+r}, v{QAT+r}")
    a("s_waitcnt vmcnt(0)")
    a("v_max_f32 v21, v22, v23")
    a("v_max3_f32 v25, v25, v26, v27")
    steps = ["row_shr:1 row_mask:0xf bank_mask:0xf", "row_shr:2 row_mask:0xf bank_mask:0xf", "row_shr:4 row_mask:0xf bank_mask:0xf",
             "row_shr:8 row_mask:0xf bank_mask:0xf", "row_bcast:15 row_mask:0xa bank_mask:0xf", "row_bcast:31 row_mask:0xc bank_mask:0xf"]
    a("s_nop 0")
    for st in steps:
        a(f"v_max_f32_dpp v21, v21, v21 {st}"); a(f"v_max_f32_dpp v25, v25, v25 {st}"); a("s_nop 0")
    a(f"""
    v_mul_f32 v21, v21, v25
    v_mul_f32 v21, 0x40400000, v21
    s_nop 0
    v_readlane_b32 s28, v21, 63
    s_nop 1
    v_mov_b32 v22, s28
    v_mov_b32 v23, {hex(f32bits(9000.0))}
    v_cmp_nle_f32 vcc, v22, v23
    s_cmp_lg_u64 vcc, 0
    s_cselect_b32 s28, 1, 0
    v_mov_b32 v22, s28
    s_lshl_b32 s29, s{S_WAVE}, 2
    s_add_u32 s29, s29, {L_UNS}
    v_mov_b32 v23, s29
    ds_write_b32 v23, v22
    s_waitcnt lgkmcnt(0)
    s_barrier
    v_and_b32 v23, 7, v1
    v_lshlrev_b32 v23, 2, v23
    ds_read_b32 v22, v23 offset:{L_UNS - 0}
    s_waitcnt lgkmcnt(0)
    v_cmp_ne_u32 vcc, 0, v22
    s_cmp_lg_u64 vcc, 0
    s_cbranch_scc0 L_at_fast
    """.replace(f"offset:{L_UNS}", "offset:0").replace("v_lshlrev_b32 v23, 2, v23\n", f"v_lshlrev_b32 v23, 2, v23\n    v_add_u32 v23, {L_UNS}, v23\n"))
    AT.gen_maxpass(a, KVB, KH, fused=True)
    a(f"s_cmp_lt_u32 s{S_WAVE}, 5"); a("s_cbranch_scc1 L_kv1")
    a(f"s_add_u32 s82, s84, {WS_KV}")
    AT.kv_dma5(a, 0, KVB); AT.kv_dma5(a, 1, KVB); AT.kv_dma5(a, 2, KVB)
    a.label("L_kv1")
    a("s_waitcnt vmcnt(0)")
    a("s_barrier")
    a.label("L_at_fast")
    pw = (1 << 6) | (1 << 7) | (1 << 8) if C2.PREW else 0
    base03 = 0b11 | pw | (1 << 9) | (1 << 10) | (1 << 11) | (1 << 12) | (1 << 13) | (1 << 14)
    a(f"s_lshl_b32 s24, {0b101001}, s{S_WAVE}")
    a(f"s_or_b32 s81, s24, {base03}")
    a(f"s_or_b32 s25, s24, {0b11 | (1 << 10) | (1 << 11) | (1 << 12)}")
    a(f"s_cmp_eq_u32 s{S_WAVE}, 4"); a("s_cselect_b32 s81, s25, s81")
    a(f"s_cmp_gt_u32 s{S_WAVE}, 4"); a("s_cselect_b32 s81, 3, s81")
    stamp(a, 14)
    AT.gen_attn_core3(a, KVB, attn_hook)
    stamp(a, 15)
    if common.STAMP:
        a(f"""
        s_lshl_b32 s24, s2, 3
        s_add_u32 s24, s24, s{S_WAVE}
        s_lshl_b32 s24, s24, 7
        s_add_u32 s24, s24, {WS_DBG1 + 0xA0000}
        v_lshlrev_b32 v251, 2, v1
        s_mov_b64 exec, 0xffff
        buffer_store_dword v252, v251, {SWS}, s24 offen
        buffer_store_dword v253, v251, {SWS}, s24 offen offset:64
        s_mov_b64 exec, -1
        """)
    CHN.LOCAL = LOCAL
    attn_epilogue(a)
    a(f"s_cmp_ge_u32 s{S_WAVE}, 4")
    a("s_cbranch_scc1 L_ch_loader")
    common.STAMP_OFF = 16
    C2.gen_compute(a)
    a(f"s_branch {END}")
    attn_hook_bodies(a)
    a.label("L_ch_loader")
    C2.gen_loader(a)
    stamp_dump(a)
    a.label(END)
    a("s_endpgm")

def attn_epilogue(a):
    OA, OB, SA = AT.OA, AT.OB, AT.SA
    a("s_barrier")
    a(f"""
    s_mul_i32 s24, s{W_}, 6144
    s_add_u32 s24, s24, {KVB}
    v_lshl_add_u32 v7, v1, 4, s24
    s_cmp_eq_u32 s{KH}, 0
    s_cbranch_scc1 L_ae_rd
    s_nop 7
    """)
    for q in range(3):
        a(f"ds_write_b128 v7, v[{OA+4*q}:{OA+4*q+3}] offset:{1024*q}")
        a(f"ds_write_b128 v7, v[{OB+4*q}:{OB+4*q+3}] offset:{1024*(3+q)}")
    a("s_waitcnt lgkmcnt(0)")
    a.label("L_ae_rd")
    a("s_barrier")
    a(f"s_cmp_eq_u32 s{KH}, 0")
    a("s_cbranch_scc0 L_ae_done")
    for q in range(6): a(f"ds_read_b128 v[{SA+4*q}:{SA+4*q+3}], v7 offset:{1024*q}")
    a("s_waitcnt lgkmcnt(0)")
    for r in range(12):
        a(f"v_add_f32 v{OA+r}, v{OA+r}, v{SA+r}")
        a(f"v_add_f32 v{OB+r}, v{OB+r}, v{SA+12+r}")
    a(f"v_mov_b32 v20, v{OA+8}"); a(f"v_mov_b32 v21, v{OA+8}"); a(f"v_mov_b32 v22, v{OB+8}"); a(f"v_mov_b32 v23, v{OB+8}")
    a("s_nop 1")
    a("v_permlane32_swap_b32 v20, v21"); a("v_permlane32_swap_b32 v22, v23")
    a("v_rcp_f32 v21, v21"); a("v_rcp_f32 v23, v23"); a("s_nop 0")
    for r in range(12):
        a(f"v_mul_f32 v{OA+r}, v{OA+r}, v21"); a(f"v_mul_f32 v{OB+r}, v{OB+r}, v23")
    for k in range(4):
        a(f"v_cvt_pk_bf16_f32 v{24+k}, v{OA+2*k}, v{OA+2*k+1}")
        a(f"v_cvt_pk_bf16_f32 v{28+k}, v{OB+2*k}, v{OB+2*k+1}")
    a(f"v_cvt_pk_bf16_f32 v32, v{OA+8}, v{OA+9}"); a(f"v_cvt_pk_bf16_f32 v33, v{OA+10}, v{OA+11}")
    a(f"v_cvt_pk_bf16_f32 v34, v{OB+8}, v{OB+9}"); a(f"v_cvt_pk_bf16_f32 v35, v{OB+10}, v{OB+11}")
    a(f"""
    v_lshrrev_b32 v36, 5, v1
    v_bfe_u32 v37, v1, 4, 1
    v_lshl_add_u32 v38, v37, 1, v36
    v_mul_u32_u24 v38, {PLANE}, v38
    v_lshl_add_u32 v38, v2, 4, v38
    v_mul_u32_u24 v39, {PLANE}, v37
    v_lshl_add_u32 v39, v2, 4, v39
    v_mov_b32 v40, 0x7fffffff
    v_cmp_eq_u32 vcc, 0, v36
    s_mul_i32 s24, s{S_J}, {10*PLANE}
    s_lshl_b32 s25, s{M_}, 8
    s_add_u32 s24, s24, s25
    v_cndmask_b32 v39, v40, v39, vcc
    s_add_u32 s24, s24, {WS_O + GUARD*16}
    s_add_u32 s25, s24, {4*PLANE}
    s_add_u32 s26, s24, {8*PLANE}
    """)
    def emit(m):
        a(f"buffer_store_dwordx4 v[24:27], v38, {SWS}, s24 offen {m}")
        a(f"buffer_store_dwordx4 v[28:31], v38, {SWS}, s25 offen {m}")
        a(f"buffer_store_dwordx4 v[32:35], v39, {SWS}, s26 offen {m}")
    CHN.st_variants(a, emit, force_sc1=not C2.PREW)
    CHN.flag_off(a, 25, CHN.FL_O, M_, S_J)
    CHN.signal(a, 25)
    a.label("L_ae_done")
```

```python
from common import *

def lane_ids(a):
    a("v_and_b32 v1, 63, v0")
    a("v_and_b32 v2, 15, v1")
    a("v_lshrrev_b32 v3, 4, v1")

def gen_colvec(a, jobreg, tag):
    skip = f'L_cv_skip_{tag}'
    a(f"s_cmp_ge_u32 s{jobreg}, 296")
    a(f"s_cbranch_scc1 {skip}")
    l3 = f'L_cv_w3_{tag}'; lg = f'L_cv_go_{tag}'
    a(f"s_cmp_ge_u32 s{jobreg}, 80")
    a(f"s_cbranch_scc1 {l3}")
    srd(a, SRD_A, P_W1)
    a(f"s_movk_i32 s24, 1280")
    a(f"s_lshl_b32 s25, s{jobreg}, 4")
    a(f"s_branch {lg}")
    a.label(l3)
    srd(a, SRD_A, P_W3)
    a(f"s_movk_i32 s24, 3456")
    a(f"s_sub_u32 s25, s{jobreg}, 80")
    a(f"s_lshl_b32 s25, s25, 4")
    a.label(lg)
    a(f"""
    v_mul_lo_u32 v4, v0, s24
    s_lshl_b32 s26, s24, 9
    v_add_u32 v5, s26, v4
    buffer_load_dwordx4 v[8:11], v4, s[{SRD_A}:{SRD_A+3}], s25 offen
    buffer_load_dwordx4 v[12:15], v5, s[{SRD_A}:{SRD_A+3}], s25 offen
    v_lshlrev_b32 v6, 2, v0
    s_mov_b32 s27, {WS_MOD + 3*2560}
    s_mov_b32 s28, {WS_MOD + 4*2560}
    buffer_load_dword v16, v6, s[{SRD_WS}:{SRD_WS+3}], s27 offen
    buffer_load_dword v17, v6, s[{SRD_WS}:{SRD_WS+3}], s28 offen
    buffer_load_dword v18, v6, s[{SRD_WS}:{SRD_WS+3}], s27 offen offset:2048
    buffer_load_dword v19, v6, s[{SRD_WS}:{SRD_WS+3}], s28 offen offset:2048
    s_waitcnt vmcnt(0)
    """)
    a(f"""
    v_cmp_gt_u32 vcc, 128, v0
    v_add_f32 v17, 1.0, v17
    v_add_f32 v19, 1.0, v19
    v_cndmask_b32 v18, 0, v18, vcc
    v_cndmask_b32 v19, 0, v19, vcc
    v_cvt_pk_bf16_f32 v20, v17, v19
    v_lshlrev_b32 v17, 16, v20
    v_and_b32 v19, 0xffff0000, v20
    """)
    for e in range(4):
        for half, sh in ((0, 'lo'), (1, 'hi')):
            c = 2*e + half
            if sh == 'lo':
                a(f"v_lshlrev_b32 v21, 16, v{8+e}"); a(f"v_lshlrev_b32 v22, 16, v{12+e}")
            else:
                a(f"v_and_b32 v21, 0xffff0000, v{8+e}"); a(f"v_and_b32 v22, 0xffff0000, v{12+e}")
            a(f"v_mul_f32 v{24+c}, v17, v21")
            a(f"v_mul_f32 v{32+c}, v16, v21")
            a(f"v_add_f32 v{40+c}, v21, v22")
            a(f"v_fmac_f32 v{24+c}, v19, v22")
            a(f"v_fmac_f32 v{32+c}, v18, v22")
    wave_reduce_add_dpp(a, list(range(24, 48)))
    a(f"""
    s_mul_i32 s28, s{S_WAVE}, 96
    v_mov_b32 v6, s28
    v_cmp_eq_u32 vcc, 63, v1
    s_and_saveexec_b64 s[30:31], vcc
    """)
    for q in range(6):
        a(f"ds_write_b128 v6, v[{24+4*q}:{27+4*q}] offset:{16*q}")
    a(f"""
    s_mov_b64 exec, s[30:31]
    s_waitcnt lgkmcnt(0)
    s_barrier
    v_cmp_gt_u32 vcc, 24, v0
    s_and_saveexec_b64 s[30:31], vcc
    s_cbranch_execz L_cv_m_{tag}
    v_lshlrev_b32 v6, 2, v0
    """)
    for w in range(8):
        a(f"ds_read_b32 v{24+w}, v6 offset:{96*w}")
    a("s_waitcnt lgkmcnt(0)")
    for w in range(1, 8):
        a(f"v_add_f32 v24, v24, v{24+w}")
    a(f"""
    v_lshrrev_b32 v7, 3, v0
    v_and_b32 v8, 7, v0
    v_mul_u32_u24 v7, 2560, v7
    v_lshl_add_u32 v7, v8, 2, v7
    s_lshl_b32 s25, s25, 1
    s_cmp_ge_u32 s{jobreg}, 80
    s_cbranch_scc1 L_cv_s3_{tag}
    s_add_u32 s25, s25, {WS_CV}
    buffer_store_dword v24, v7, s[{SRD_WS}:{SRD_WS+3}], s25 offen
    s_branch L_cv_m_{tag}
    """)
    a.label(f'L_cv_s3_{tag}')
    a(f"""
    v_cmp_le_u32 vcc, 16, v0
    s_and_b64 exec, exec, vcc
    s_cbranch_execz L_cv_m_{tag}
    v_lshlrev_b32 v7, 2, v8
    s_add_u32 s25, s25, {WS_CV + CV_S3}
    buffer_store_dword v24, v7, s[{SRD_WS}:{SRD_WS+3}], s25 offen
    """)
    a.label(f'L_cv_m_{tag}')
    a("s_mov_b64 exec, s[30:31]")
    a("s_waitcnt vmcnt(0)")
    a("s_barrier")
    a.label(skip)

XF = 16
ACC = 64
WF = 96
GS_ = 144
L_STG = 122880

def gen_qkv(a, name='qkv_kernel'):
    header(a, name)
    END = 'L_qkv_end'
    prologue(a, end_label=END)
    lane_ids(a)
    a("s_mov_b32 s32, s2"); gen_colvec(a, 32, 'a')
    a("s_add_u32 s32, s2, 256"); gen_colvec(a, 32, 'b')
    W_, KH, ROW0, M_ = 75, 76, 77, 78
    srd(a, SRD_A, P_X)
    a(f"""
    s_and_b32 s{W_}, s{S_WAVE}, 3
    s_lshr_b32 s{KH}, s{S_WAVE}, 2
    s_lshl_b32 s{ROW0}, s{S_X}, 8
    s_lshl_b32 s24, s{S_B}, 6
    s_add_u32 s{ROW0}, s{ROW0}, s24
    s_lshr_b32 s{M_}, s{ROW0}, 4
    s_add_u32 s{M_}, s{M_}, s{W_}
    """)
    a(f"""
    v_lshrrev_b32 v4, 2, v1
    v_and_b32 v5, 3, v1
    v_lshrrev_b32 v6, 3, v4
    v_lshlrev_b32 v6, 1, v6
    v_xor_b32 v5, v5, v6
    v_mul_u32_u24 v4, 1280, v4
    v_lshl_add_u32 v4, v5, 4, v4
    s_lshr_b32 s24, s{S_WAVE}, 1
    s_lshl_b32 s25, s24, 4
    s_add_u32 s25, s25, s{ROW0}
    s_mul_i32 s25, s25, 1280
    s_and_b32 s26, s{S_WAVE}, 1
    s_mul_i32 s26, s26, 5
    s_lshl_b32 s27, s26, 6
    s_add_u32 s25, s25, s27
    s_mul_i32 s24, s24, 10
    s_add_u32 s24, s24, s26
    s_lshl_b32 s24, s24, 10
    s_add_u32 s24, s24, {L_STG}
    """)
    def xdma(rnd):
        for q in range(5):
            a(f"s_add_u32 m0, s24, {1024*q}")
            a(f"s_add_u32 s27, s25, {64*q + 640*rnd}")
            a(f"buffer_load_dwordx4 v4, s[{SRD_A}:{SRD_A+3}], s27 offen lds")
    xdma(0)
    a(f"""
    v_lshlrev_b32 v5, 4, v1
    s_mul_i32 s28, s{S_J}, 122880
    s_lshl_b32 s29, s{S_WAVE}, 10
    s_add_u32 s28, s28, s29
    s_add_u32 s28, s28, {WS_WQ}
    """)
    for q in range(15):
        a(f"s_add_u32 m0, s29, {8192*q}")
        a(f"s_add_u32 s27, s28, {8192*q}")
        a(f"buffer_load_dwordx4 v5, s[{SRD_WS}:{SRD_WS+3}], s27 offen lds")
    a(f"""
    v_lshrrev_b32 v6, 3, v2
    v_lshlrev_b32 v6, 1, v6
    v_xor_b32 v6, v3, v6
    v_lshl_add_u32 v6, v2, 2, v6
    v_lshlrev_b32 v6, 4, v6
    s_mul_i32 s30, s{W_}, 10240
    s_add_u32 s30, s30, {L_STG}
    v_add_u32 v6, s30, v6
    s_waitcnt vmcnt(15)
    s_barrier
    s_cmp_eq_u32 s{KH}, 0
    s_cbranch_scc0 L_qkv_r0
    """)
    for q in range(10):
        a(f"ds_read_b128 v[{XF+4*q}:{XF+4*q+3}], v6 offset:{1024*q}")
    a("s_waitcnt lgkmcnt(0)")
    a.label('L_qkv_r0')
    a("s_barrier")
    xdma(1)
    a("s_waitcnt vmcnt(0)")
    a("s_barrier")
    a(f"s_cmp_eq_u32 s{KH}, 1")
    a("s_cbranch_scc0 L_qkv_r1")
    for q in range(10):
        a(f"ds_read_b128 v[{XF+4*q}:{XF+4*q+3}], v6 offset:{1024*q}")
    a("s_waitcnt lgkmcnt(0)")
    a.label('L_qkv_r1')
    a("s_barrier")
    a(f"""
    v_lshlrev_b32 v7, 4, v0
    v_cmp_gt_u32 vcc, 160, v0
    s_and_saveexec_b64 s[30:31], vcc
    s_cbranch_execz L_qkv_mv
    s_mov_b32 s27, {WS_MOD}
    s_mov_b32 s28, {WS_MOD + 2560}
    buffer_load_dwordx4 v[8:11], v7, s[{SRD_WS}:{SRD_WS+3}], s27 offen
    buffer_load_dwordx4 v[12:15], v7, s[{SRD_WS}:{SRD_WS+3}], s28 offen
    s_waitcnt vmcnt(0)
    v_add_f32 v12, 1.0, v12
    v_add_f32 v13, 1.0, v13
    v_add_f32 v14, 1.0, v14
    v_add_f32 v15, 1.0, v15
    v_cvt_pk_bf16_f32 v56, v12, v13
    v_cvt_pk_bf16_f32 v57, v14, v15
    v_lshlrev_b32 v12, 16, v56
    v_and_b32 v13, 0xffff0000, v56
    v_lshlrev_b32 v14, 16, v57
    v_and_b32 v15, 0xffff0000, v57
    v_add_u32 v7, {L_STG}, v7
    ds_write_b128 v7, v[12:15]
    ds_write_b128 v7, v[8:11] offset:2560
    """)
    a.label('L_qkv_mv')
    a("s_mov_b64 exec, s[30:31]")
    a("v_mov_b32 v56, 0"); a("v_mov_b32 v57, 0"); a("v_mov_b32 v58, 0"); a("v_mov_b32 v59, 0")
    a("v_mov_b32 v60, 0x3f803f80")
    for r in range(40):
        a(f"v_dot2c_f32_bf16 v{56 + 2*(r&1)}, v{XF+r}, v60")
        a(f"v_dot2c_f32_bf16 v{57 + 2*(r&1)}, v{XF+r}, v{XF+r}")
    a("s_nop 2")
    a("v_add_f32 v56, v56, v58"); a("v_add_f32 v57, v57, v59")
    reduce_g(a, [56, 57], [58, 59])
    a(f"""
    s_lshl_b32 s27, s{S_WAVE}, 7
    s_add_u32 s27, s27, {L_STG + 5120}
    v_lshl_add_u32 v8, v2, 3, s27
    ds_write_b64 v8, v[56:57]
    s_xor_b32 s28, s{S_WAVE}, 4
    s_lshl_b32 s28, s28, 7
    s_add_u32 s28, s28, {L_STG + 5120}
    v_lshl_add_u32 v9, v2, 3, s28
    s_waitcnt lgkmcnt(0)
    s_barrier
    ds_read_b64 v[58:59], v9
    s_waitcnt lgkmcnt(0)
    v_add_f32 v56, v56, v58
    v_add_f32 v57, v57, v59
    v_mul_f32 v56, {1.0/640!r}, v56
    v_mul_f32 v57, {1.0/640!r}, v57
    v_fma_f32 v57, -v56, v56, v57
    v_add_f32 v57, 0x3727c5ac, v57
    v_rsq_f32 v57, v57
    s_nop 0
    v_mul_f32 v56, v56, v57
    """.replace(repr(1.0/640), '0x3acccccd'))
    a(f"""
    s_mul_i32 s27, s{KH}, 1280
    s_add_u32 s27, s27, {L_STG}
    v_lshl_add_u32 v10, v3, 5, s27
    """)
    for q in range(10):
        gb = GS_ + 16*(q & 1)
        a(f"ds_read_b128 v[{gb}:{gb+3}], v10 offset:{128*q}")
        a(f"ds_read_b128 v[{gb+4}:{gb+7}], v10 offset:{128*q+16}")
        a(f"ds_read_b128 v[{gb+8}:{gb+11}], v10 offset:{128*q+2560}")
        a(f"ds_read_b128 v[{gb+12}:{gb+15}], v10 offset:{128*q+2560+16}")
        a("s_waitcnt lgkmcnt(0)")
        for e in range(4):
            x = XF + 4*q + e
            a(f"v_lshlrev_b32 v11, 16, v{x}")
            a(f"v_and_b32 v12, 0xffff0000, v{x}")
            a(f"v_fma_f32 v11, v11, v57, -v56")
            a(f"v_fma_f32 v12, v12, v57, -v56")
            a(f"v_fma_f32 v11, v11, v{gb+2*e}, v{gb+8+2*e}")
            a(f"v_fma_f32 v12, v12, v{gb+2*e+1}, v{gb+8+2*e+1}")
            a(f"v_cvt_pk_bf16_f32 v{x}, v11, v12")
    for r in range(28):
        a(f"v_mov_b32 v{ACC+r}, 0")
    a(f"""
    s_mul_i32 s27, s{KH}, {10*6*1024}
    v_lshl_add_u32 v13, v1, 4, s27
    """)
    def wread(q):
        base = WF + 24*(q & 1)
        for tt in range(6):
            a(f"ds_read_b128 v[{base+4*tt}:{base+4*tt+3}], v13 offset:{(q*6+tt)*1024}")
    wread(0)
    for q in range(10):
        if q + 1 < 10:
            wread(q + 1)
            a("s_waitcnt lgkmcnt(6)")
        else:
            a("s_waitcnt lgkmcnt(0)")
        base = WF + 24*(q & 1)
        h = XF + 4*q
        for tt in range(5):
            a(f"v_mfma_f32_16x16x32_bf16 v[{ACC+4*tt}:{ACC+4*tt+3}], v[{base+4*tt}:{base+4*tt+3}], v[{h}:{h+3}], v[{ACC+4*tt}:{ACC+4*tt+3}]")
        a(f"v_mfma_f32_16x16x32_bf16 v[{ACC+20}:{ACC+23}], v[{base+20}:{base+23}], v[{h}:{h+3}], v[{ACC+20}:{ACC+23}]")
        a(f"v_mfma_f32_16x16x32_bf16 v[{ACC+24}:{ACC+27}], v[{h}:{h+3}], v[{base+20}:{base+23}], v[{ACC+24}:{ACC+27}]")
    a("s_barrier")
    a(f"""
    s_mul_i32 s27, s{S_WAVE}, 7168
    v_lshl_add_u32 v14, v1, 4, s27
    s_xor_b32 s28, s{S_WAVE}, 4
    s_mul_i32 s28, s28, 7168
    v_lshl_add_u32 v15, v1, 4, s28
    s_nop 4
    """)
    for t in range(7):
        a(f"ds_write_b128 v14, v[{ACC+4*t}:{ACC+4*t+3}] offset:{1024*t}")
    a("s_waitcnt lgkmcnt(0)")
    a("s_barrier")
    for t in range(7):
        a(f"ds_read_b128 v[{WF+4*t}:{WF+4*t+3}], v15 offset:{1024*t}")
    a("s_waitcnt lgkmcnt(0)")
    for r in range(28):
        a(f"v_add_f32 v{ACC+r}, v{ACC+r}, v{WF+r}")
    a(f"s_cmp_eq_u32 s{KH}, 0")
    a(f"s_cbranch_scc0 {END}")
    for r in range(20):
        a(f"v_mul_f32 v{ACC+r}, {hex(f32bits(QSCALE))}, v{ACC+r}")
    for t in range(5):
        a(f"v_cvt_pk_bf16_f32 v{16+2*t}, v{ACC+4*t}, v{ACC+4*t+1}")
        a(f"v_cvt_pk_bf16_f32 v{17+2*t}, v{ACC+4*t+2}, v{ACC+4*t+3}")
    a("v_mov_b32 v26, v24"); a("v_mov_b32 v27, v25"); a("s_nop 1")
    a("v_permlane32_swap_b32 v24, v26"); a("v_permlane32_swap_b32 v25, v27")
    a("""
    s_mov_b32 exec_lo, 0
    v_mov_b32 v24, 0
    v_mov_b32 v25, 0
    v_mov_b32 v26, 0
    v_mov_b32 v27, 0
    s_mov_b32 exec_lo, -1
    """)
    a(f"""
    s_lshl_b32 s27, s{M_}, 3
    s_add_u32 s27, s27, s{S_J}
    s_mul_i32 s27, s27, 3072
    s_add_u32 s27, s27, {WS_Q}
    v_lshlrev_b32 v4, 4, v1
    v_lshlrev_b32 v5, 3, v1
    buffer_store_dwordx4 v[16:19], v4, s[{SRD_WS}:{SRD_WS+3}], s27 offen
    buffer_store_dwordx4 v[20:23], v4, s[{SRD_WS}:{SRD_WS+3}], s27 offen offset:1024
    buffer_store_dwordx2 v[24:25], v5, s[{SRD_WS}:{SRD_WS+3}], s27 offen offset:2048
    buffer_store_dwordx2 v[26:27], v5, s[{SRD_WS}:{SRD_WS+3}], s27 offen offset:2560
    """)
    gen_kv_store(a, M_, ACC+20, ACC+24, END)
    a.label(END)
    a("s_endpgm")

def f32bits(x):
    import struct
    return struct.unpack('<I', struct.pack('<f', x))[0]

def gen_kv_store(a, M_, N, Sx, END, st=''):
    a(f"""
    s_cmp_ge_u32 s{S_J}, 3
    s_cbranch_scc1 {END}
    s_lshr_b32 s24, s{M_}, 1
    s_mul_i32 s24, s24, {KVT}
    s_add_u32 s24, s24, {WS_KV}
    s_and_b32 s25, s{M_}, 1
    v_cvt_pk_bf16_f32 v28, v{N}, v{N+1}
    v_cvt_pk_bf16_f32 v29, v{N+2}, v{N+3}
    v_cvt_pk_bf16_f32 v30, v{Sx}, v{Sx+1}
    v_cvt_pk_bf16_f32 v31, v{Sx+2}, v{Sx+3}
    v_mul_f32 v32, v{N}, v{N}
    v_fmac_f32 v32, v{N+1}, v{N+1}
    v_fmac_f32 v32, v{N+2}, v{N+2}
    v_fmac_f32 v32, v{N+3}, v{N+3}
    s_lshl_b32 s26, s25, 4
    v_add_u32 v33, s26, v2
    s_cmp_eq_u32 s{S_J}, 1
    s_cbranch_scc1 L_kv_j1
    s_cmp_eq_u32 s{S_J}, 2
    s_cbranch_scc1 L_kv_j2
    """)
    a(f"""
    v_lshrrev_b32 v34, 1, v3
    v_lshl_add_u32 v34, v34, 5, v33
    v_lshlrev_b32 v34, 4, v34
    v_and_b32 v35, 1, v3
    v_lshl_add_u32 v34, v35, 3, v34
    buffer_store_dwordx2 v[28:29], v34, s[{SRD_WS}:{SRD_WS+3}], s24 offen {st}
    """)
    reduce_g(a, [32], [36])
    a("s_mov_b32 s26, 0")
    a("s_branch L_kv_kn")
    a.label('L_kv_j1')
    a(f"""
    v_and_b32 v34, 1, v3
    v_lshl_add_u32 v34, v34, 5, v2
    v_lshlrev_b32 v34, 4, v34
    v_lshrrev_b32 v35, 1, v3
    v_lshl_add_u32 v34, v35, 3, v34
    s_lshl_b32 s26, s25, 10
    s_add_u32 s26, s26, s24
    buffer_store_dwordx2 v[30:31], v34, s[{SRD_WS}:{SRD_WS+3}], s26 offen offset:{KV_V0} {st}
    s_branch {END}
    """)
    a.label('L_kv_j2')
    a(f"""
    v_mov_b32 v36, 0x3f803f80
    v_mov_b32 v37, 0x00003f80
    v_cmp_eq_u32 vcc, 1, v3
    v_lshl_add_u32 v34, v3, 5, v33
    v_lshlrev_b32 v34, 3, v34
    v_cndmask_b32 v28, v28, v36, vcc
    v_cndmask_b32 v29, v29, v37, vcc
    v_mov_b32 v38, 0x7fffffff
    v_cmp_gt_u32 vcc, 2, v3
    s_nop 1
    v_cndmask_b32 v34, v38, v34, vcc
    buffer_store_dwordx2 v[28:29], v34, s[{SRD_WS}:{SRD_WS+3}], s24 offen offset:{KV_KT} {st}
    v_cmp_eq_u32 vcc, 8, v2
    v_and_b32 v34, 1, v3
    v_lshlrev_b32 v34, 5, v34
    v_cndmask_b32 v30, v30, v36, vcc
    v_cndmask_b32 v31, v31, v36, vcc
    v_add3_u32 v34, v34, v2, 12
    v_lshlrev_b32 v34, 4, v34
    v_lshrrev_b32 v35, 1, v3
    v_lshl_add_u32 v34, v35, 3, v34
    v_subrev_u32 v35, 4, v2
    v_cmp_gt_u32 vcc, 5, v35
    s_lshl_b32 s26, s25, 10
    s_add_u32 s26, s26, s24
    v_cndmask_b32 v34, v38, v34, vcc
    buffer_store_dwordx2 v[30:31], v34, s[{SRD_WS}:{SRD_WS+3}], s26 offen offset:{KV_V0} {st}
    v_cmp_eq_u32 vcc, 0, v3
    s_nop 1
    v_cndmask_b32 v32, 0, v32, vcc
    s_mov_b32 s26, 512
    """)
    a.label('L_kv_kn')
    for st_ in (1, 2, 4, 8):
        a("s_nop 1")
        a(f"v_max_f32_dpp v32, v32, v32 row_shr:{st_} row_mask:0xf bank_mask:0xf")
    a(f"""
    s_lshl_b32 s27, s{M_}, 2
    s_add_u32 s27, s27, s26
    s_add_u32 s27, s27, {WS_KN}
    v_cmp_eq_u32 vcc, 15, v1
    v_mov_b32 v34, 0
    s_and_saveexec_b64 s[30:31], vcc
    buffer_store_dword v32, v34, s[{SRD_WS}:{SRD_WS+3}], s27 offen {st}
    s_mov_b64 exec, s[30:31]
    """)
```

```python
S, D, H, DH, F = 2048, 640, 32, 20, 1728
NAME = 'adaLN_cond__grouped_kv_mqa__mixer_s_mlp__prompt'

P_X, P_WQ, P_WK, P_WV, P_WO, P_BX, P_W1, P_W2, P_W3, P_W4, P_C, P_WMOD, P_OUT, P_DBG, P_WS = range(15)
SZ = {P_X: S*D*2, P_WQ: D*D*2, P_WK: D*DH*2, P_WV: D*DH*2, P_WO: D*D*2, P_W1: D*D*2, P_W2: D*D*2,
      P_W3: D*F*2, P_W4: F*D*2, P_C: D*2, P_WMOD: D*6*D*2, P_OUT: S*D*2, P_DBG: 256, P_WS: 268435456}

PLANE_ROWS = 2064
PLANE = PLANE_ROWS * 16
GUARD = 8

WS_MOD   = 0x0000000
WS_CV    = 0x0004000
CV_G, CV_B, CV_C, CV_S3 = 0, 640*4, 1280*4, 1920*4
WS_FLAGS = 0x0008000
WS_KN    = 0x0018000
WS_ST1   = 0x0020000
WS_ST2   = 0x00A0000
WS_KV    = 0x0100000
KVT      = 3584
KV_KT, KV_V0, KV_V1 = 1024, 1536, 2560
WS_WQ    = 0x0140000
WS_WO    = 0x0240000
WS_W1    = 0x0340000
WS_W2    = 0x0440000
WS_W3    = 0x0540000
WS_W4    = 0x0780000
WS_Q     = 0x09C0000
WS_O     = 0x0D00000
ACT_SZ   = 0x0290000
WS_Z     = WS_O + ACT_SZ
WS_G     = WS_Z + ACT_SZ
WS_Y     = WS_G + ACT_SZ
WS_U     = WS_Y + ACT_SZ
WS_DBG1  = WS_U + 0x0700000
WS_MODT  = WS_DBG1 + 0x10000
WS_FLE   = WS_DBG1 + 0x1C000
WS_KVF   = WS_DBG1 + 0x18000
FL_KV, FL_P = 7, 8
assert 80 * PLANE <= ACT_SZ and 216 * PLANE <= 0x0700000

def kmap_nu(s, g, jj): return 32*s + 8*g + jj
def kmap_pi(s, g, jj):
    a, u = divmod(s, 5); h, r = divmod(jj, 4)
    if u < 4:
        j = 2*a + u//2; tt = 2*(u % 2) + h
    else:
        j = 2*a + h; tt = 4
    return 80*j + 16*tt + 4*g + r
def w3_group(jj):
    return (7*jj, 7) if jj < 12 else (84 + 6*(jj-12), 6)
def kmap_ups(s, g, jj):
    h, r = divmod(jj, 4)
    if s < 48:
        grp, p = divmod(s, 3)
        return 16*(w3_group(grp)[0] + 2*p + h) + 4*g + r
    grp = 2*(s-48) + h
    return 16*(w3_group(grp)[0] + 6) + 4*g + r
def kmap_om(s, g, jj):
    P = 4*s + g; j, p = divmod(P, 10); h, r = divmod(jj, 4)
    if p < 8:
        head = 2*(p >> 2) + ((p >> 1) & 1); hh = p & 1
        d = 4*hh + 8*h + r
    else:
        head = (p - 8) + 2*h; d = 16 + r
    return 80*j + 20*head + d
def qcol(tt, m):
    g, r = divmod(m, 4)
    if tt < 4:
        return 20*(2*(tt >> 1) + (g & 1)) + 8*(g >> 1) + 4*(tt & 1) + r
    return 20*g + 16 + r

for km, KS in ((kmap_nu, 20), (kmap_pi, 20), (kmap_om, 20), (kmap_ups, 54)):
    allk = sorted(km(s, g, jj) for s in range(KS) for g in range(4) for jj in range(8))
    assert allk == list(range(32*KS)), km
assert sorted(qcol(tt, m) for tt in range(5) for m in range(16)) == list(range(80))

QSCALE = (DH ** -0.5) * 1.4426950408889634
```

```python
def stage_a():
    import k_front0
    return [('front0_kernel', k_front0.gen_front0, 256, 512, 59392, 64)]
def stage_b():
    import k_front0, k_qkv
    return stage_a() + [('qkv_kernel', k_qkv.gen_qkv, 256, 512, 163840, 192)]
def stage_c():
    import k_attn
    return stage_b() + [('attn_kernel', k_attn.gen_attn, 256, 512, 163840, 128)]
def stage_d():
    import k_chain
    return stage_c() + [('chain_kernel', k_chain.gen_chain, 256, 512, 163840, 256)]
def fused():
    import k_fused
    from layout import NAME
    return [(NAME + '_kernel', k_fused.gen_fused, 256, 512, 163840, 256)]
VERSIONS = {'f': fused, 'd': stage_d, 'a': stage_a, 'b': stage_b, 'c': stage_c}
```

```python
import sys, importlib
sys.path.insert(0, 'gen')
from common import *

HEAD = open('cdna_kernels/' + NAME + '.s.ref').read().split('; Override launch geometry')[0]

def build(kernels, out):
    txt = HEAD
    for (name, fn, grid, block, lds, vgpr) in kernels:
        if len(kernels) == 1 and name == NAME + '_kernel':
            txt += f"; @launch grid=({grid},1,1) block=({block},1,1) lds={lds}\n"
        else:
            txt += f"; @launch kernel={name} grid=({grid},1,1) block=({block},1,1) lds={lds}\n"
    txt += '.amdgcn_target "amdgcn-amd-amdhsa--gfx950"\n.text\n'
    seen = []
    nprob = 0
    for (name, fn, grid, block, lds, vgpr) in kernels:
        if name in seen: continue
        seen.append(name)
        a = Asm()
        fn(a, name)
        nprob += len(check_hazards(a.lines))
        txt += a.text()
    txt += '.section .rodata,"a"\n'
    seen = []
    for (name, fn, grid, block, lds, vgpr) in kernels:
        if name in seen: continue
        seen.append(name)
        txt += descriptor(name, 256 if __import__('common').STAMP else vgpr)
    open(out, 'w').write(txt)
    print('wrote', out, len(txt), 'bytes; hazards:', nprob)

if __name__ == '__main__':
    import versions, common, os
    common.STAMP = bool(os.environ.get('STAMP'))
    which = sys.argv[1] if len(sys.argv) > 1 else 'stage1'
    out = sys.argv[2] if len(sys.argv) > 2 else 'out_' + which + '.s'
    build(versions.VERSIONS[which](), out)
```

```python
from common import *
import common
from k_qkv import f32bits
from k_chain import (flag_addr, act_srd, st_variants, mf16, unpack_bf16x4, flag_off, GC1, GC2,
                     FL_O, FL_Z, FL_S1, FL_G, FL_Y, FL_S2, FL_U)
import k_chain as C1

V_ACTOFF, V_W0, V_W1, VM, V_XOFF = 4, 5, 6, 7, 3
V_XOFF = 0
X1, Y1, ACC = 8, 28, 48
WB = (104, 124, 144)
WB3 = (104, 132)
ACT = 164
T0 = 244
L_MISC = 145408
W_, ROW0, M_, FLAGV, LOCAL = 75, 77, 78, 79, 100
SRD_ACT = SRD_A
S_LO, S_DA, S_DB, S_DC, S_CCH, S_PH = 81, 82, 83, 84, 86, 88
S_SPIN = 101
SWS = f"s[{SRD_WS}:{SRD_WS+3}]"
SACT = f"s[{SRD_ACT}:{SRD_ACT+3}]"
import os
SLOT4 = 30720
PREW = os.environ.get('PREW', '0') in ('1', 'zo')
PREWU = os.environ.get('PREW', '0') == '1'
BUF_G = WS_O
BUF_Y = WS_Z
WNT = os.environ.get('WNT', '')
FINE = bool(os.environ.get('FINE')); FINE2 = bool(os.environ.get('FINE2')); FINE4 = bool(os.environ.get('FINE4'))

def poll(a, soff_reg, nlanes, tmp=T0, stride_sh=2):
    lp = a.new_label('L_poll'); dn = a.new_label('L_polld')
    a(f"v_lshlrev_b32 v{tmp}, {stride_sh}, v1")
    a(f"s_mov_b64 exec, {hex((1 << nlanes) - 1)}")
    a(f"s_mov_b32 s{S_SPIN}, 0x40000")
    a.label(lp)
    a(f"buffer_load_dword v{tmp+1}, v{tmp}, {SWS}, s{soff_reg} offen sc1")
    a("s_waitcnt vmcnt(0)")
    a(f"v_cmp_ne_u32 vcc, s{FLAGV}, v{tmp+1}")
    a(f"s_sub_u32 s{S_SPIN}, s{S_SPIN}, 1")
    a("s_cmp_eq_u64 vcc, 0")
    a(f"s_cbranch_scc1 {dn}")
    a(f"s_cmp_lg_u32 s{S_SPIN}, 0")
    a(f"s_cbranch_scc1 {lp}")
    a.label(dn)
    a("s_mov_b64 exec, -1")

def signal(a, soff_reg, cond=None, tmp=T0):
    a("s_waitcnt vmcnt(0)")
    a(f"v_mov_b32 v{tmp}, s{FLAGV}")
    a(f"v_mov_b32 v{tmp+1}, 0")
    a("s_mov_b64 exec, 1")
    st_variants(a, lambda m: a(f"buffer_store_dword v{tmp}, v{tmp+1}, {SWS}, s{soff_reg} offen {m}"), cond=cond)
    a("s_mov_b64 exec, -1")

def act_load(a, reg, off=0):
    a(f"buffer_load_dwordx4 v[{reg}:{reg+3}], v{V_ACTOFF}, {SACT}, s{S_LO} offen" + (f" offset:{off}" if off else "") + " sc1")
def lo_step(a): a(f"s_add_u32 s{S_LO}, s{S_LO}, {4*PLANE}")

def set_actoff(a, mreg):
    a(f"v_mul_u32_u24 v{V_ACTOFF}, {PLANE}, v3")
    a(f"v_lshl_add_u32 v{V_ACTOFF}, v2, 4, v{V_ACTOFF}")
    a(f"s_lshl_b32 s24, s{mreg}, 8")
    a(f"s_add_u32 s24, s24, {GUARD*16}")
    a(f"v_add_u32 v{V_ACTOFF}, s24, v{V_ACTOFF}")

NWIN = int(os.environ.get('NWIN', '8'))
def act_issue(a, t):
    act_load(a, ACT + 4*t); lo_step(a)
    if t == 4: a(f"s_add_u32 s{S_LO}, s{S_LO}, s{S_DA}")
    if t == 9: a(f"s_add_u32 s{S_LO}, s{S_LO}, s{S_DB}")
    if t == 14: a(f"s_add_u32 s{S_LO}, s{S_LO}, s{S_DC}")
def issue_acts20(a):
    for t in range(NWIN): act_issue(a, t)

def gemm20(a):
    def wread(t):
        b = WB[t % 3]; va = V_W0 if t < 10 else V_W1; o = (t % 10) * 5120
        for tt in range(5): a(f"ds_read_b128 v[{b+4*tt}:{b+4*tt+3}], v{va} offset:{o + 1024*tt}")
    wread(0); wread(1)
    for r in range(0, 20, 2): a(f"v_mov_b64 v[{ACC+r}:{ACC+r+1}], 0")
    for t in range(20):
        issued = min(20, t + NWIN)
        a(f"s_waitcnt vmcnt({issued-1-t}) lgkmcnt({5 if t < 19 else 0})")
        if FINE2 and t in (0, 5, 10): stamp(a, {0: 11, 5: 12, 10: 13}[t])
        if t + 2 < 20: wread(t + 2)
        for tt in range(5): a(mf16(ACC + 4*tt, WB[t % 3] + 4*tt, ACT + 4*t))
        if t + NWIN < 20: act_issue(a, t + NWIN)

L_ST = L_MISC + 6400
def vec_read(a, dst, ldsoff, n=5):
    for t in range(n): a(f"ds_read_b128 v[{dst+4*t}:{dst+4*t+3}], v{VM} offset:{ldsoff + 64*t}")

def pk(op, d, x, y, z=None):
    s_ = f"v_pk_{op}_f32 v[{d}:{d+1}], v[{x}:{x+1}], v[{y}:{y+1}]"
    if z is not None: s_ += f", v[{z}:{z+1}]"
    return s_
def pk_bcast(op, d, x, sreg_pair_lo, z=None):
    return pk(op, d, x, sreg_pair_lo, z)

def pack_store_pi(a, src, ws_off, cond=None, force=False, half_sc1=False):
    P = ACT
    for t in range(5):
        a(f"v_cvt_pk_bf16_f32 v{P+2*t}, v{src+4*t}, v{src+4*t+1}")
        a(f"v_cvt_pk_bf16_f32 v{P+2*t+1}, v{src+4*t+2}, v{src+4*t+3}")
    a(f"s_add_u32 s28, s97, {ws_off}")
    a(f"s_add_u32 s27, s28, {4*PLANE}")
    a(f"s_add_u32 s26, s96, {ws_off}")
    if half_sc1:
        a(f"buffer_store_dwordx2 v[{P+8}:{P+9}], v{V_ACTOFF}, {SWS}, s26 offen sc1")
    def emit(m):
        a(f"buffer_store_dwordx4 v[{P}:{P+3}], v{V_ACTOFF}, {SWS}, s28 offen {m}")
        a(f"buffer_store_dwordx4 v[{P+4}:{P+7}], v{V_ACTOFF}, {SWS}, s27 offen {m}")
        if not half_sc1:
            a(f"buffer_store_dwordx2 v[{P+8}:{P+9}], v{V_ACTOFF}, {SWS}, s26 offen {m}")
    st_variants(a, emit, force_sc1=force, cond=cond)

def gelu(a, regs0, n, tmp0):
    for r in range(0, n, 2): a(pk('mul', tmp0+r, regs0+r, regs0+r))
    for r in range(0, n, 2): a(pk('fma', tmp0+r, tmp0+r, T0+4, T0+6))
    for r in range(0, n, 2): a(pk('mul', tmp0+r, tmp0+r, regs0+r))
    for r in range(n): a(f"v_exp_f32 v{tmp0+r}, v{tmp0+r}")
    for r in range(n): a(f"v_add_f32 v{tmp0+r}, 1.0, v{tmp0+r}")
    for r in range(n): a(f"v_rcp_f32 v{tmp0+r}, v{tmp0+r}")
    a("s_nop 0")
    for r in range(0, n, 2): a(pk('mul', regs0+r, regs0+r, tmp0+r))
def gelu_consts(a):
    a(f"v_mov_b32 v{T0+4}, {hex(f32bits(GC2))}"); a(f"v_mov_b32 v{T0+5}, v{T0+4}")
    a(f"v_mov_b32 v{T0+6}, {hex(f32bits(GC1))}"); a(f"v_mov_b32 v{T0+7}, v{T0+6}")

def setup(a, ws_off, nplanes, d0=0, d1=0, d2=0, d3=0):
    if d0 or d1:
        act_srd(a, ws_off - 32, nplanes); d0 += 32; d1 += 32; d2 += 32; d3 += 32
    else:
        act_srd(a, ws_off, nplanes)
    a(f"s_mov_b32 s{S_LO}, {d0 & 0xffffffff}")
    a(f"s_mov_b32 s{S_DA}, {(d1-d0) & 0xffffffff}")
    a(f"s_mov_b32 s{S_DB}, {(d2-d1) & 0xffffffff}")
    a(f"s_mov_b32 s{S_DC}, {(d3-d2) & 0xffffffff}")

def mflag(a, dst, p, mreg, stride=32):
    a(f"s_mul_i32 s{dst}, s{mreg}, {stride}"); a(f"s_add_u32 s{dst}, s{dst}, {flag_addr(p)}")

def gen_compute(a):
    S = T0
    set_actoff(a, M_)
    a(f"""
    v_lshlrev_b32 v{VM}, 4, v3
    v_add_u32 v{VM}, {L_MISC}, v{VM}
    v_lshlrev_b32 v{V_W0}, 4, v1
    v_add_u32 v{V_W1}, 51200, v{V_W0}
    s_lshr_b32 s26, s{S_J}, 1
    s_mul_i32 s26, s26, 5
    s_and_b32 s27, s{S_J}, 1
    s_lshl_b32 s28, s27, 1
    s_add_u32 s28, s28, s26
    s_mul_i32 s97, s28, {4*PLANE}
    s_add_u32 s26, s26, 4
    s_mul_i32 s96, s26, {4*PLANE}
    s_lshl_b32 s27, s27, 3
    s_add_u32 s96, s96, s27
    v_mov_b32 v{T0}, {L_MISC + 5248}
    ds_read_b128 v[{ACT}:{ACT+3}], v{T0}
    ds_read_b32 v{ACT+4}, v{T0} offset:16
    """)
    a("s_waitcnt vmcnt(0)")
    for t in range(5): unpack_bf16x4(a, X1 + 4*t, 208 + 2*t, 208 + 2*t + 1)
    a("s_waitcnt lgkmcnt(0)")
    for q in range(5): a(f"v_readfirstlane_b32 s{91+q}, v{ACT+q}")
    stamp(a, 1, off=True)
    a("s_waitcnt vmcnt(0)")
    a("s_barrier")
    mflag(a, 24, FL_O, M_); poll(a, 24, 8)
    setup(a, WS_O, 80)
    a(f"s_mov_b32 s{S_PH}, 0")
    a.label("L_g_entry")
    if FINE2: stamp(a, 8)
    issue_acts20(a)
    if FINE2: stamp(a, 9)
    gemm20(a)
    if FINE2: stamp(a, 14)
    a("s_barrier")
    a("s_nop 4")
    a(f"s_cmp_eq_u32 s{S_PH}, 1"); a("s_cbranch_scc1 L_ep_w1")
    a(f"s_cmp_eq_u32 s{S_PH}, 2"); a("s_cbranch_scc1 L_ep_w2")
    stamp(a, 3, off=True)
    V1, V2, V3 = 104, 124, 144
    vec_read(a, V1, 0); vec_read(a, V2, 320); vec_read(a, V3, 640)
    a("s_waitcnt lgkmcnt(10)")
    for r in range(0, 20, 2): a(pk('fma', X1+r, V1+r, ACC+r, X1+r))
    a("s_waitcnt lgkmcnt(5)")
    for r in range(0, 20, 2): a(pk('mul', ACC+r, X1+r, V2+r))
    pack_store_pi(a, ACC, WS_Z, force=not PREW, half_sc1=PREW)
    A = ACT + 12
    a("s_waitcnt lgkmcnt(0)")
    a(f"v_mov_b64 v[{A}:{A+1}], v[{X1}:{X1+1}]"); a(pk('mul', A+2, X1, X1))
    a(f"v_mov_b64 v[{A+4}:{A+5}], v[{ACC}:{ACC+1}]"); a(pk('mul', A+6, ACC, ACC)); a(pk('mul', A+8, ACC, V2)); a(pk('mul', A+10, ACC, V3))
    for r in range(2, 20, 2):
        a(pk('add', A, A, X1+r)); a(pk('fma', A+2, X1+r, X1+r, A+2)); a(pk('add', A+4, A+4, ACC+r))
        a(pk('fma', A+6, ACC+r, ACC+r, A+6)); a(pk('fma', A+8, ACC+r, V2+r, A+8)); a(pk('fma', A+10, ACC+r, V3+r, A+10))
    for i in range(6): a(f"v_add_f32 v{S+i}, v{A+2*i}, v{A+2*i+1}")
    reduce_g(a, [S+i for i in range(6)], [A+i for i in range(6)])
    a(f"""
    s_lshl_b32 s28, s{M_}, 12
    s_lshl_b32 s26, s{S_J}, 9
    s_add_u32 s28, s28, s26
    s_add_u32 s28, s28, {WS_ST1}
    v_lshlrev_b32 v{A+8}, 5, v2
    s_mov_b64 exec, 0xffff
    """)
    def emit(m):
        a(f"buffer_store_dwordx4 v[{S}:{S+3}], v{A+8}, {SWS}, s28 offen {m}")
        a(f"buffer_store_dwordx2 v[{S+4}:{S+5}], v{A+8}, {SWS}, s28 offen offset:16 {m}")
    st_variants(a, emit, force_sc1=not PREW)
    a("s_mov_b64 exec, -1")
    flag_off(a, 25, FL_Z, M_, S_J)
    signal(a, 25, tmp=A+10)
    stamp(a, 4, off=True)
    a("s_barrier")
    mflag(a, 24, FL_Z, M_); poll(a, 24, 8)
    stamp(a, 5, off=True)
    setup(a, WS_Z, 80)
    a(f"s_mov_b32 s{S_PH}, 1")
    a("s_branch L_g_entry")
    a.label("L_ep_w1")
    stamp(a, 6, off=True)
    a(f"""
    s_lshl_b32 s24, s{W_}, 10
    s_add_u32 s24, s24, {L_ST}
    v_lshl_add_u32 v{S+6}, v2, 5, s24
    ds_read_b128 v[{S}:{S+3}], v{S+6}
    ds_read_b64 v[{S+4}:{S+5}], v{S+6} offset:16
    """)
    vec_read(a, V1, 1280); vec_read(a, V2, 1600); vec_read(a, V3, 1920)
    a("s_waitcnt lgkmcnt(15)")
    B = ACT + 16
    for k, r in enumerate((S+5, S+3, S+4, S+2, S, S+1)):
        a(f"v_mov_b32 v{B+2*k}, v{r}"); a(f"v_mov_b32 v{B+2*k+1}, v{r}")
    a("s_waitcnt lgkmcnt(0)")
    for r in range(0, 20, 2): a(pk('mul', V2+r, V2+r, B))
    for r in range(0, 20, 2): a(pk('fma', V2+r, V3+r, B+2, V2+r))
    for r in range(0, 20, 2): a(pk('fma', V2+r, V1+r, B+4, V2+r))
    for r in range(0, 20, 2): a(pk('fma', ACC+r, ACC+r, B+6, V2+r))
    if FINE: stamp(a, 3)
    gelu_consts(a)
    gelu(a, ACC, 20, V1)
    if FINE: stamp(a, 4)
    pack_store_pi(a, ACC, BUF_G)
    flag_off(a, 25, FL_G, M_, S_J)
    vec_read(a, V1, 320); vec_read(a, V2, 640)
    a("s_waitcnt lgkmcnt(0)")
    for r in range(0, 20, 2): a(f"v_pk_add_f32 v[{Y1+r}:{Y1+r+1}], v[{X1+r}:{X1+r+1}], v[{B+8}:{B+9}] neg_lo:[0,1] neg_hi:[0,1]")
    for r in range(0, 20, 2): a(pk('mul', V1+r, V1+r, B+10))
    for r in range(0, 20, 2): a(pk('fma', Y1+r, Y1+r, V1+r, V2+r))
    if FINE: stamp(a, 5)
    signal(a, 25)
    if FINE: stamp(a, 6)
    a("s_barrier")
    a(f"s_and_b32 s90, s{M_}, 15")
    a(f"s_cmp_eq_u32 s90, 0"); a("s_cbranch_scc1 L_e_top")
    a(f"s_cmp_eq_u32 s90, 15"); a("s_cbranch_scc0 L_e_mid")
    a("s_mov_b32 exec_lo, 0xc000c000"); a("s_mov_b32 exec_hi, 0xc000c000"); a("s_mov_b32 s29, 1"); a("s_branch L_e_st")
    a.label("L_e_top")
    a("s_mov_b32 exec_lo, 0x00030003"); a("s_mov_b32 exec_hi, 0x00030003"); a("s_mov_b32 s29, 0")
    a.label("L_e_st")
    P = ACT
    a(f"buffer_store_dwordx4 v[{P}:{P+3}], v{V_ACTOFF}, {SWS}, s28 offen sc1")
    a(f"buffer_store_dwordx4 v[{P+4}:{P+7}], v{V_ACTOFF}, {SWS}, s27 offen sc1")
    a(f"buffer_store_dwordx2 v[{P+8}:{P+9}], v{V_ACTOFF}, {SWS}, s26 offen sc1")
    a(f"""
    s_mov_b64 exec, -1
    s_lshl_b32 s24, s{S_X}, 1
    s_add_u32 s24, s24, s29
    s_lshl_b32 s24, s24, 3
    s_add_u32 s24, s24, s{S_J}
    s_lshl_b32 s24, s24, 7
    s_add_u32 s24, s24, {WS_FLE}
    v_mov_b32 v{T0}, s{FLAGV}
    v_mov_b32 v{T0+1}, 0
    s_waitcnt vmcnt(0)
    s_mov_b64 exec, 1
    buffer_store_dword v{T0}, v{T0+1}, {SWS}, s24 offen sc1
    s_mov_b64 exec, -1
    """)
    a(f"s_mul_i32 s24, s{M_}, 32")
    a(f"s_add_u32 s24, s24, {flag_addr(FL_G)}")
    a("s_cmp_eq_u32 s90, 15"); a("s_cbranch_scc0 L_e_p1")
    a("s_sub_u32 s24, s24, 32")
    a.label("L_e_p1")
    poll(a, 24, 16)
    a(f"s_cmp_eq_u32 s{M_}, 0"); a("s_cbranch_scc1 L_w1_go")
    a(f"s_cmp_eq_u32 s{M_}, 127"); a("s_cbranch_scc1 L_w1_go")
    a(f"s_lshl_b32 s24, s{S_X}, 1")
    a("s_sub_u32 s25, s24, 1"); a("s_add_u32 s24, s24, 2")
    a("s_cmp_eq_u32 s90, 0"); a("s_cselect_b32 s24, s25, s24")
    a("s_lshl_b32 s24, s24, 10"); a(f"s_add_u32 s24, s24, {WS_FLE}")
    poll(a, 24, 8, stride_sh=7)
    a("s_branch L_w1_go")
    a.label("L_e_mid")
    a(f"s_mul_i32 s24, s{M_}, 32")
    a(f"s_add_u32 s24, s24, {flag_addr(FL_G) - 32}")
    poll(a, 24, 24)
    a.label("L_w1_go")
    stamp(a, 7, off=True)
    setup(a, BUF_G, 80, -16, 16, -32, 32)
    a(f"s_mov_b32 s{S_PH}, 2")
    a("s_branch L_g_entry")
    a.label("L_ep_w2")
    stamp(a, 8, off=True)
    for r in range(0, 20, 2): a(pk('add', Y1+r, Y1+r, ACC+r))
    pack_store_pi(a, Y1, BUF_Y)
    A = ACT + 12
    a(f"v_mov_b64 v[{A}:{A+1}], v[{Y1}:{Y1+1}]"); a(pk('mul', A+2, Y1, Y1))
    for r in range(2, 20, 2):
        a(pk('add', A, A, Y1+r)); a(pk('fma', A+2, Y1+r, Y1+r, A+2))
    a(f"v_add_f32 v{S}, v{A}, v{A+1}"); a(f"v_add_f32 v{S+1}, v{A+2}, v{A+3}")
    reduce_g(a, [S, S+1], [A, A+1])
    a(f"""
    s_lshl_b32 s28, s{M_}, 10
    s_lshl_b32 s26, s{S_J}, 7
    s_add_u32 s28, s28, s26
    s_add_u32 s28, s28, {WS_ST2}
    v_lshlrev_b32 v{A+2}, 3, v2
    s_mov_b64 exec, 0xffff
    """)
    st_variants(a, lambda m: a(f"buffer_store_dwordx2 v[{S}:{S+1}], v{A+2}, {SWS}, s28 offen {m}"))
    a("s_mov_b64 exec, -1")
    flag_off(a, 25, FL_Y, M_, S_J)
    signal(a, 25, tmp=A+4)
    gen_w3(a)
    gen_w4(a)

def gen_w3(a):
    M3, JJ = 89, 90
    S = T0
    a(f"""
    s_lshl_b32 s{M3}, s{S_X}, 4
    s_lshr_b32 s24, s{S_T}, 4
    s_lshl_b32 s24, s24, 3
    s_add_u32 s{M3}, s{M3}, s24
    s_lshl_b32 s24, s{W_}, 1
    s_add_u32 s{M3}, s{M3}, s24
    s_and_b32 s{JJ}, s{S_T}, 15
    """)
    a("s_barrier")
    mflag(a, 24, FL_Y, M3); poll(a, 24, 16)
    stamp(a, 9, off=True)
    set_actoff(a, M3)
    act_srd(a, BUF_Y, 80)
    a(f"s_mov_b32 s{S_LO}, 0")
    A3 = 164
    NW3 = 5
    def aload(sl):
        act_load(a, A3 + 8*sl); act_load(a, A3 + 8*sl + 4, 256); lo_step(a)
    for k in range(NW3): aload(k)
    for r in range(0, 56, 2): a(f"v_mov_b64 v[{ACC+r}:{ACC+r+1}], 0")
    def wread7(buf, va, q):
        for tt in range(7): a(f"ds_read_b128 v[{WB3[buf]+4*tt}:{WB3[buf]+4*tt+3}], v{va} offset:{q*7168 + 1024*tt}")
    a(f"v_lshlrev_b32 v{V_W0}, 4, v1")
    a(f"v_add_u32 v{V_W1}, {5*7168}, v{V_W0}")
    wread7(0, V_W0, 0)
    a(f"s_mov_b32 s{S_CCH}, 0")
    a.label("L_w3_loop")
    for k in range(10):
        buf = k & 1
        a(f"s_waitcnt vmcnt({2*NW3-2}) lgkmcnt(0)")
        if k == 9:
            a(f"v_add_u32 v{V_W0}, {10*7168}, v{V_W0}")
            a(f"v_add_u32 v{V_W1}, {10*7168}, v{V_W1}")
            wread7(1 - buf, V_W0, 0)
        elif k + 1 < 5: wread7(1 - buf, V_W0, k + 1)
        else: wread7(1 - buf, V_W1, k + 1 - 5)
        for tt in range(7):
            a(mf16(ACC + 4*tt, WB3[buf] + 4*tt, A3 + 8*k))
            a(mf16(ACC + 28 + 4*tt, WB3[buf] + 4*tt, A3 + 8*k + 4))
            if tt == 1: aload((k + NW3) % 10)
    a(f"s_add_u32 s{S_CCH}, s{S_CCH}, 1")
    a(f"s_cmp_lt_u32 s{S_CCH}, 2")
    a("s_cbranch_scc1 L_w3_loop")
    a("s_waitcnt vmcnt(0) lgkmcnt(0)")
    a("s_barrier")
    stamp(a, 10, off=True)
    a(f"""
    s_lshl_b32 s24, s{W_}, 10
    s_add_u32 s24, s24, {L_ST}
    v_lshl_add_u32 v{S+6}, v2, 5, s24
    ds_read_b64 v[{S}:{S+1}], v{S+6}
    ds_read_b64 v[{S+2}:{S+3}], v{S+6} offset:512
    """)
    CS = WB3[1]
    vec_read(a, CS, 2240, 7)
    B = A3 + 16
    a("s_waitcnt lgkmcnt(7)")
    for k in (0, 2):
        a(f"v_sub_f32 v{B+2*k}, 0, v{S+k}"); a(f"v_mov_b32 v{B+2*k+2}, v{S+k+1}")
        a(f"v_mov_b32 v{B+2*k+1}, v{B+2*k}"); a(f"v_mov_b32 v{B+2*k+3}, v{B+2*k+2}")
    gelu_consts(a)
    a("s_waitcnt lgkmcnt(0)")
    P = A3 + 32
    a(f"""
    s_mul_i32 s26, s{JJ}, {3*4*PLANE}
    s_add_u32 s26, s26, {WS_U}
    s_add_u32 s27, s26, {4*PLANE}
    s_add_u32 s28, s26, {8*PLANE}
    s_lshr_b32 s24, s{JJ}, 1
    s_add_u32 s24, s24, 48
    s_mul_i32 s24, s24, {4*PLANE}
    s_and_b32 s29, s{JJ}, 1
    s_lshl_b32 s29, s29, 3
    s_add_u32 s24, s24, s29
    s_add_u32 s24, s24, {WS_U}
    """)
    for rt in range(2):
        R0 = ACC + 28*rt
        for r in range(0, 28, 2): a(pk('fma', R0+r, CS+r, B+4*rt, R0+r))
        for r in range(0, 28, 2): a(pk('mul', R0+r, R0+r, B+4*rt+2))
        gelu(a, R0, 28, WB3[0])
        for tt in range(7):
            a(f"v_cvt_pk_bf16_f32 v{P+16*rt+2*tt}, v{R0+4*tt}, v{R0+4*tt+1}")
            a(f"v_cvt_pk_bf16_f32 v{P+16*rt+2*tt+1}, v{R0+4*tt+2}, v{R0+4*tt+3}")
        lab = a.new_label('L_u6')
        a(f"s_cmp_ge_u32 s{JJ}, 12"); a(f"s_cbranch_scc1 {lab}")
        a(f"buffer_store_dwordx2 v[{P+16*rt+12}:{P+16*rt+13}], v{V_ACTOFF}, {SWS}, s24 offen offset:{256*rt} sc1")
        a.label(lab)
        def emit(m, rt=rt):
            for p, sr in enumerate((26, 27, 28)):
                a(f"buffer_store_dwordx4 v[{P+16*rt+4*p}:{P+16*rt+4*p+3}], v{V_ACTOFF}, {SWS}, s{sr} offen offset:{256*rt} {m}")
        st_variants(a, emit, force_sc1=not PREWU)
    a(f"s_lshr_b32 s24, s{M3}, 1"); a(f"s_mul_i32 s25, s24, 64"); a(f"s_lshl_b32 s29, s{JJ}, 2"); a("s_add_u32 s25, s25, s29"); a(f"s_add_u32 s25, s25, {flag_addr(FL_U)}")
    signal(a, 25)

def gen_w4(a):
    stamp(a, 11, off=True)
    a("s_barrier")
    a(f"s_lshr_b32 s24, s{M_}, 1"); a(f"s_mul_i32 s24, s24, 64"); a(f"s_add_u32 s24, s24, {flag_addr(FL_U)}"); poll(a, 24, 16)
    stamp(a, 12, off=True)
    set_actoff(a, M_)
    act_srd(a, WS_U, 216)
    a(f"s_mov_b32 s{S_LO}, 0")
    NW = 18
    NF = int(os.environ.get('NF4', '10'))
    for k in range(NF): act_load(a, ACT + 4*k); lo_step(a)
    for r in range(0, 20, 2): a(f"v_mov_b64 v[{ACC+r}:{ACC+r+1}], 0")
    a(f"v_lshlrev_b32 v{V_W0}, 4, v1")
    a(f"s_mov_b32 s{S_CCH}, 0")
    a(f"s_mov_b32 s85, 0")
    def wread(t, q):
        b = WB[t % 3]
        for tt in range(5): a(f"ds_read_b128 v[{b+4*tt}:{b+4*tt+3}], v{V_W0} offset:{q*5120 + 1024*tt}")
    def advance():
        a(f"s_add_u32 s{S_CCH}, s{S_CCH}, {SLOT4}")
        a(f"s_cmp_eq_u32 s{S_CCH}, {4*SLOT4}")
        a(f"s_cselect_b32 s{S_CCH}, 0, s{S_CCH}")
        a(f"v_lshl_add_u32 v{V_W0}, v1, 4, s{S_CCH}")
    wread(0, 0); wread(1, 1)
    a.label("L_w4_loop")
    for t in range(NW):
        q = t % 6
        if q == 4:
            a(f"s_waitcnt vmcnt({NF-1}) lgkmcnt(0)")
            lab = a.new_label('L_w4_nb')
            if t == NW - 2:
                a("s_cmp_eq_u32 s85, 2"); a(f"s_cbranch_scc1 {lab}")
            a("s_barrier")
            advance()
            wread(t + 2, 0)
            if t == NW - 2: a.label(lab)
        elif q == 5:
            a(f"s_waitcnt vmcnt({NF-1}) lgkmcnt(5)")
            wread(t + 2, 1)
        else:
            a(f"s_waitcnt vmcnt({NF-1}) lgkmcnt(5)")
            wread(t + 2, q + 2)
        for tt in range(5): a(mf16(ACC + 4*tt, WB[t % 3] + 4*tt, ACT + 4*t))
        if not os.environ.get('W4NOACT'): act_load(a, ACT + 4*((t + NF) % NW))
        lo_step(a)
    a("s_add_u32 s85, s85, 1")
    a("s_cmp_lt_u32 s85, 3")
    a("s_cbranch_scc1 L_w4_loop")
    a("s_waitcnt vmcnt(0) lgkmcnt(0)")
    stamp(a, 13, off=True)
    V1 = 104
    vec_read(a, V1, 960)
    for r in range(0, 20, 2): a(pk('add', ACC+r, ACC+r, Y1+r))
    a("s_waitcnt lgkmcnt(0)")
    for r in range(0, 20, 2): a(pk('fma', ACC+r, ACC+r, V1+r, X1+r))
    for t in range(5):
        a(f"v_cvt_pk_bf16_f32 v{ACT+2*t}, v{ACC+4*t}, v{ACC+4*t+1}")
        a(f"v_cvt_pk_bf16_f32 v{ACT+2*t+1}, v{ACC+4*t+2}, v{ACC+4*t+3}")
    srd(a, SRD_B, P_OUT)
    a(f"s_mul_i32 s24, s{S_J}, 160")
    for t in range(5):
        a(f"buffer_store_dwordx2 v[{ACT+2*t}:{ACT+2*t+1}], v{V_XOFF}, s[{SRD_B}:{SRD_B+3}], s24 offen offset:{32*t}")
    if common.STAMP:
        a("s_waitcnt vmcnt(0)")
        stamp(a, 14, off=True)
        stamp_dump(a)

def dma_run(a, n, sg, sl, vreg):
    full, rem = divmod(n, 4)
    def group(k):
        a(f"s_mov_b32 m0, s{sl}")
        a(f"s_add_u32 s{sl}, s{sl}, {1024*k}")
        for q in range(k):
            a(f"buffer_load_dwordx4 v{vreg}, {SWS}, s{sg} offen" + (f" offset:{1024*q}" if q else "") + f" {WNT} lds")
        a(f"s_add_u32 s{sg}, s{sg}, {1024*k}")
    if full > 2:
        lp = a.new_label('L_dr')
        a(f"s_mov_b32 s24, {full}")
        a.label(lp)
        group(4)
        a("s_sub_u32 s24, s24, 1"); a("s_cmp_lg_u32 s24, 0"); a(f"s_cbranch_scc1 {lp}")
    else:
        for _ in range(full): group(4)
    if rem: group(rem)

LVA = 200
def loader_stream(a, ws_base, grp_reg, grp_bytes, per_wave):
    a(f"s_mul_i32 s88, s{grp_reg}, {grp_bytes}")
    a(f"s_add_u32 s88, s88, {ws_base}")
    a(f"s_mul_i32 s89, s{W_}, {per_wave*1024}")
    a(f"s_add_u32 s88, s88, s89")
    dma_run(a, per_wave, 88, 89, LVA)

TOUCH = os.environ.get('TOUCH', '0') == '1'
def touch(a, ws_base, grp_reg, grp_bytes, part_reg, part_bytes, ninstr, dst=232):
    if not TOUCH: return 0
    a(f"s_mul_i32 s24, s{grp_reg}, {grp_bytes}")
    a(f"s_mul_i32 s25, s{part_reg}, {part_bytes}")
    a("s_add_u32 s24, s24, s25")
    a(f"s_mul_i32 s25, s{W_}, {part_bytes // 4}")
    a("s_add_u32 s24, s24, s25")
    a(f"s_add_u32 s24, s24, {ws_base}")
    a(f"v_lshlrev_b32 v{dst+7}, 7, v1")
    for q in range(ninstr):
        a(f"buffer_load_dword v{dst+q}, v{dst+7}, {SWS}, s24 offen")
        if q + 1 < ninstr: a("s_add_u32 s24, s24, 8192")
    return ninstr

WARM = os.environ.get('WARM', '0') == '1'
def warm_planes(a, ws_off, planes_expr, nplanes, mreg, nrt, dst, extra_sreg=None):
    if not WARM: return
    per = 2 * nrt
    sh = {2: 1, 4: 2}[per]
    a(f"v_lshrrev_b32 v{dst+1}, {sh}, v1")
    a(f"v_and_b32 v{dst+2}, {per-1}, v1")
    planes_expr(a, dst + 1)
    a(f"v_mul_u32_u24 v{dst+1}, {PLANE}, v{dst+1}")
    a(f"v_lshl_add_u32 v{dst+1}, v{dst+2}, 7, v{dst+1}")
    a(f"s_lshl_b32 s24, s{mreg}, 8")
    a(f"s_add_u32 s24, s24, {ws_off + GUARD*16}")
    n = nplanes * per
    if n >= 64: pass
    elif n > 32: a("s_mov_b32 exec_hi, " + hex((1 << (n - 32)) - 1))
    else: a("s_mov_b64 exec, " + hex((1 << n) - 1))
    a(f"buffer_load_dword v{dst}, v{dst+1}, {SWS}, s24 offen")
    a("s_mov_b64 exec, -1")

def planes_pi(a, v):
    a(f"s_lshr_b32 s25, s{S_J}, 1"); a("s_mul_i32 s25, s25, 20")
    a(f"s_and_b32 s26, s{S_J}, 1"); a("s_lshl_b32 s26, s26, 3"); a("s_add_u32 s26, s26, s25")
    a("s_add_u32 s25, s25, 8")
    a(f"v_cmp_gt_u32 vcc, 8, v{v}")
    a(f"v_mov_b32 v{v+2+1}, s25"); a(f"v_mov_b32 v{v+2+2}, s26")
    a(f"v_cndmask_b32 v{v+3}, v{v+3}, v{v+4}, vcc")
    a(f"v_add_u32 v{v}, v{v}, v{v+3}")
def planes_o(a, v):
    a(f"s_mul_i32 s25, s{S_J}, 10"); a(f"v_add_u32 v{v}, s25, v{v}")
def planes_u(jjreg):
    def f(a, v):
        a(f"s_mul_i32 s26, s{jjreg}, 12")
        a(f"s_lshr_b32 s25, s{jjreg}, 1"); a("s_lshl_b32 s25, s25, 2"); a("s_add_u32 s25, s25, 180")
        a(f"v_cmp_gt_u32 vcc, 12, v{v}")
        a(f"v_mov_b32 v{v+3}, s25"); a(f"v_mov_b32 v{v+4}, s26")
        a(f"v_cndmask_b32 v{v+3}, v{v+3}, v{v+4}, vcc")
        a(f"v_add_u32 v{v}, v{v}, v{v+3}")
    return f

def loader_stats1(a):
    S = T0
    mflag(a, 24, FL_Z, M_); poll(a, 24, 8)
    a(f"""
    s_lshl_b32 s24, s{M_}, 12
    s_add_u32 s24, s24, {WS_ST1}
    v_lshlrev_b32 v{S}, 5, v2
    v_lshl_add_u32 v{S}, v3, 10, v{S}
    buffer_load_dwordx4 v[{ACT}:{ACT+3}], v{S}, {SWS}, s24 offen sc1
    buffer_load_dwordx2 v[{ACT+4}:{ACT+5}], v{S}, {SWS}, s24 offen offset:16 sc1
    buffer_load_dwordx4 v[{ACT+8}:{ACT+11}], v{S}, {SWS}, s24 offen offset:512 sc1
    buffer_load_dwordx2 v[{ACT+12}:{ACT+13}], v{S}, {SWS}, s24 offen offset:528 sc1
    s_waitcnt vmcnt(0)
    """)
    for i in range(6): a(f"v_add_f32 v{S+i}, v{ACT+i}, v{ACT+8+i}")
    reduce_g(a, [S+i for i in range(6)], [ACT+i for i in range(6)])
    C1.gen_stats_math.__globals__['ACT'] = ACT
    C1.gen_stats_math(a, S)
    a(f"""
    s_lshl_b32 s24, s{W_}, 10
    s_add_u32 s24, s24, {L_ST}
    v_lshl_add_u32 v{S+6}, v2, 5, s24
    s_mov_b64 exec, 0xffff
    ds_write_b128 v{S+6}, v[{S}:{S+3}]
    ds_write_b64 v{S+6}, v[{S+4}:{S+5}] offset:16
    s_mov_b64 exec, -1
    s_waitcnt lgkmcnt(0)
    """)

def loader_stats2(a):
    S = T0; M3 = 92
    a(f"""
    s_lshl_b32 s{M3}, s{S_X}, 4
    s_lshr_b32 s24, s{S_T}, 4
    s_lshl_b32 s24, s24, 3
    s_add_u32 s{M3}, s{M3}, s24
    s_lshl_b32 s24, s{W_}, 1
    s_add_u32 s{M3}, s{M3}, s24
    """)
    mflag(a, 24, FL_Y, M3); poll(a, 24, 16)
    a(f"""
    s_lshl_b32 s24, s{M3}, 10
    s_add_u32 s24, s24, {WS_ST2}
    v_lshlrev_b32 v{S}, 3, v2
    v_lshl_add_u32 v{S}, v3, 8, v{S}
    buffer_load_dwordx2 v[{ACT}:{ACT+1}], v{S}, {SWS}, s24 offen sc1
    buffer_load_dwordx2 v[{ACT+2}:{ACT+3}], v{S}, {SWS}, s24 offen offset:128 sc1
    buffer_load_dwordx2 v[{ACT+4}:{ACT+5}], v{S}, {SWS}, s24 offen offset:1024 sc1
    buffer_load_dwordx2 v[{ACT+6}:{ACT+7}], v{S}, {SWS}, s24 offen offset:1152 sc1
    s_waitcnt vmcnt(0)
    v_add_f32 v{S}, v{ACT}, v{ACT+2}
    v_add_f32 v{S+1}, v{ACT+1}, v{ACT+3}
    v_add_f32 v{S+2}, v{ACT+4}, v{ACT+6}
    v_add_f32 v{S+3}, v{ACT+5}, v{ACT+7}
    """)
    reduce_g(a, [S, S+1, S+2, S+3], [ACT+8, ACT+9, ACT+10, ACT+11])
    i640 = '0x3acccccd'
    for k in (0, 2):
        a(f"v_mul_f32 v{S+k}, {i640}, v{S+k}")
        a(f"v_mul_f32 v{S+k+1}, {i640}, v{S+k+1}")
        a(f"v_fma_f32 v{S+k+1}, -v{S+k}, v{S+k}, v{S+k+1}")
        a(f"v_add_f32 v{S+k+1}, 0x3727c5ac, v{S+k+1}")
        a(f"v_rsq_f32 v{S+k+1}, v{S+k+1}")
    a(f"""
    s_lshl_b32 s24, s{W_}, 10
    s_add_u32 s24, s24, {L_ST}
    v_lshl_add_u32 v{S+6}, v2, 5, s24
    s_mov_b64 exec, 0xffff
    ds_write_b64 v{S+6}, v[{S}:{S+1}]
    ds_write_b64 v{S+6}, v[{S+2}:{S+3}] offset:512
    s_mov_b64 exec, -1
    s_waitcnt lgkmcnt(0)
    """)

def gen_loader(a):
    a(f"v_lshlrev_b32 v{LVA}, 4, v1")
    a("s_waitcnt vmcnt(0)"); a("s_barrier")
    a(f"v_mov_b32 v{T0}, {L_MISC + 5248}")
    a(f"ds_read_b128 v[{ACT}:{ACT+3}], v{T0}")
    a(f"ds_read_b32 v{ACT+4}, v{T0} offset:16")
    a("s_waitcnt lgkmcnt(0)")
    for q in range(5): a(f"v_readfirstlane_b32 s{91+q}, v{ACT+q}")
    a("s_barrier")
    loader_stream(a, WS_W1, S_J, 102400, 25)
    a(f"s_and_b32 s90, s{S_T}, 15"); a(f"s_lshr_b32 s93, s{S_T}, 4")
    n = touch(a, WS_W3, 90, 143360, 93, 71680, 3)
    a(f"s_waitcnt vmcnt({n})"); a("s_barrier")
    loader_stats1(a)
    a("s_barrier")
    loader_stream(a, WS_W2, S_J, 102400, 25)
    n = touch(a, WS_W4, S_J, 276480, S_B, 69120, 3)
    a(f"s_waitcnt vmcnt({n})"); a("s_barrier")
    a("s_barrier")
    a(f"s_and_b32 s90, s{S_T}, 15")
    loader_stream(a, WS_W3, 90, 143360, 35)
    a("s_waitcnt vmcnt(0)"); a("s_barrier")
    loader_stats2(a)
    a("s_barrier")
    a(f"""
    s_mul_i32 s88, s{S_J}, 276480
    s_add_u32 s88, s88, {WS_W4}
    s_lshl_b32 s89, s{W_}, 13
    s_add_u32 s88, s88, s89
    s_mov_b32 s90, 0
    s_mov_b32 s91, 0
    v_mov_b32 v201, 0x7ffffff0
    s_cmp_eq_u32 s{W_}, 3
    s_cselect_b64 vcc, -1, 0
    s_nop 0
    v_cndmask_b32 v201, v{LVA}, v201, vcc
    """)
    def issue():
        a(f"s_add_u32 s24, s91, s89")
        a(f"s_mov_b32 m0, s24")
        a(f"s_add_u32 s25, s88, 4096")
        for q in range(4):
            if not os.environ.get('W4NOW'): a(f"buffer_load_dwordx4 v{LVA}, {SWS}, s88 offen offset:{1024*q} {WNT} lds")
        a(f"s_add_u32 m0, s24, 4096")
        a(f"s_add_u32 s88, s88, {30*1024}")
        for q in range(2):
            if not os.environ.get('W4NOW'): a(f"buffer_load_dwordx4 v{LVA}, {SWS}, s25 offen offset:{1024*q} {WNT} lds")
        a(f"s_add_u32 s26, s24, {4096}")
        a(f"s_cmp_eq_u32 s{W_}, 3")
        a(f"s_cselect_b32 s26, {L_MISC + 12288 - 2048}, s26")
        a(f"s_mov_b32 m0, s26")
        a("s_nop 0")
        for q in range(2, 4):
            if not os.environ.get('W4NOW'): a(f"buffer_load_dwordx4 v201, {SWS}, s25 offen offset:{1024*q} {WNT} lds")
        a(f"s_add_u32 s91, s91, {SLOT4}")
        a(f"s_cmp_eq_u32 s91, {4*SLOT4}")
        a(f"s_cselect_b32 s91, 0, s91")
        a("s_add_u32 s90, s90, 1")
    a.label("L_l4_pro")
    issue()
    a("s_cmp_lt_u32 s90, 4"); a("s_cbranch_scc1 L_l4_pro")
    a("s_waitcnt vmcnt(0)"); a("s_barrier")
    a("s_mov_b32 s92, 0")
    a.label("L_l4_loop")
    def dyn(reg):
        if not common.STAMP: return
        a("s_memrealtime s[98:99]"); a("s_waitcnt lgkmcnt(0)")
        a("v_mov_b32 v249, s98"); a("v_cmp_eq_u32 vcc, s92, v1"); a("s_nop 1"); a(f"v_cndmask_b32 v{reg}, v{reg}, v249, vcc")
    dyn(250)
    a("s_waitcnt vmcnt(16)")
    dyn(251)
    a("s_barrier")
    dyn(252)
    a("s_cmp_ge_u32 s90, 9"); a("s_cbranch_scc1 L_l4_dum")
    issue()
    a("s_branch L_l4_nx")
    a.label("L_l4_dum")
    a("s_waitcnt vmcnt(0)")
    a.label("L_l4_nx")
    a("s_add_u32 s92, s92, 1")
    a("s_cmp_lt_u32 s92, 8"); a("s_cbranch_scc1 L_l4_loop")
    a("s_waitcnt vmcnt(0)")
    if common.STAMP:
        a(f"""
        s_lshl_b32 s24, s2, 3
        s_add_u32 s24, s24, s{S_WAVE}
        s_mul_i32 s24, s24, 96
        s_add_u32 s24, s24, {WS_DBG1 + 0x60000}
        v_lshlrev_b32 v249, 2, v1
        s_mov_b64 exec, 0xff
        buffer_store_dword v250, v249, {SWS}, s24 offen
        buffer_store_dword v251, v249, {SWS}, s24 offen offset:32
        buffer_store_dword v252, v249, {SWS}, s24 offen offset:64
        s_mov_b64 exec, -1
        """)
```

```python
from common import *
import common
from k_qkv import lane_ids, f32bits
import k_attn as AT
import k_chain as CHN
import k_front2 as F2
import k_chain2 as C2

W_, KH, ROW0, M_, FLAGV = 75, 76, 77, 78, 79
LOCAL = 100
L_WQ = 0
L_STG = 102400
L_KVW = 126976
L_GA = 152576
L_F = 159744
L_DUMMY = L_F + 2048
KVB = 102400
L_UNS = 145408 + 6144
L_MISC = 145408
L_G16 = L_MISC + 2688
L_S16 = L_MISC + 3968
L_SC = L_MISC + 5248
DBG_NONCE = 128
WS_XC = WS_FLAGS + 14 * 4096
SWS = f"s[{SRD_WS}:{SRD_WS+3}]"

import os
SLEEP = int(os.environ.get('SLEEP', '4'))
def set_exec(a, n):
    if n >= 64: a("s_mov_b64 exec, -1")
    elif n > 32:
        a("s_mov_b32 exec_lo, -1"); a(f"s_mov_b32 exec_hi, {hex((1 << (n-32)) - 1)}")
    else:
        a(f"s_mov_b64 exec, {hex((1 << n) - 1)}")

def poll_generic(a, vaddr, vdata, soff, nregs_check, ndw, lanes_mask=None, srd=SWS, tagreg=FLAGV, extra=''):
    lp = a.new_label('L_pg'); dn = a.new_label('L_pgd')
    if lanes_mask is not None: set_exec(a, lanes_mask)
    a("s_mov_b32 s101, 0x40000")
    a.label(lp)
    suf = {1: 'dword', 2: 'dwordx2', 4: 'dwordx4'}[ndw]
    a(f"buffer_load_{suf} {v(vdata, ndw)}, v{vaddr}, {srd}, {soff} offen sc1 {extra}")
    a("s_waitcnt vmcnt(0)")
    first = True
    for r in nregs_check:
        if first:
            a(f"v_cmp_ne_u32 vcc, s{tagreg}, v{r}"); first = False
        else:
            a(f"v_cmp_ne_u32 s[26:27], s{tagreg}, v{r}"); a("s_or_b64 vcc, vcc, s[26:27]")
    a("s_sub_u32 s101, s101, 1")
    a("s_cmp_eq_u64 vcc, 0")
    a(f"s_cbranch_scc1 {dn}")
    a(f"s_sleep {SLEEP}")
    a("s_cmp_lg_u32 s101, 0")
    a(f"s_cbranch_scc1 {lp}")
    a.label(dn)
    if lanes_mask is not None: a("s_mov_b64 exec, -1")

def front(a):
    SA_, SB_, SC_ = f"s[{SRD_A}:{SRD_A+3}]", f"s[{SRD_B}:{SRD_B+3}]", f"s[{SRD_C}:{SRD_C+3}]"
    a("s_getreg_b32 s4, hwreg(HW_REG_XCC_ID, 0, 4)")
    srd(a, SRD_C, P_DBG)
    srd(a, SRD_A, P_C)
    srd(a, SRD_B, P_WMOD)
    a(f"""
    s_and_b32 s{W_}, s{S_WAVE}, 3
    s_lshr_b32 s{KH}, s{S_WAVE}, 2
    s_lshl_b32 s{ROW0}, s{S_X}, 8
    s_lshl_b32 s24, s{S_B}, 6
    s_add_u32 s{ROW0}, s{ROW0}, s24
    s_lshr_b32 s{M_}, s{ROW0}, 4
    s_add_u32 s{M_}, s{M_}, s{W_}
    """)
    a(f"""
    s_cmp_lg_u32 s2, 0
    s_cbranch_scc1 L_f_non
    s_cmp_lg_u32 s{S_WAVE}, 0
    s_cbranch_scc1 L_f_non
    s_memrealtime s[24:25]
    s_waitcnt lgkmcnt(0)
    s_or_b32 s24, s24, 1
    v_mov_b32 v8, s24
    v_mov_b32 v9, {DBG_NONCE}
    s_mov_b64 exec, 1
    buffer_store_dword v8, v9, {SC_}, 0 offen sc1
    s_mov_b64 exec, -1
    """)
    a.label("L_f_non")
    stamp(a, 1)
    a(f"""
    s_mul_i32 s32, s{S_X}, 20
    s_add_u32 s32, s32, s{S_T}
    s_mul_i32 s26, s{S_X}, 12
    s_add_u32 s26, s26, s{S_T}
    s_add_u32 s26, s26, 140
    s_cmp_lt_u32 s{S_T}, 20
    s_cselect_b32 s32, s32, s26
    s_lshl_b32 s33, s{S_X}, 5
    s_add_u32 s33, s33, s{S_T}
    s_add_u32 s33, s33, 256
    s_lshl_b32 s26, s32, 4
    s_lshl_b32 s27, s33, 4
    s_min_u32 s27, s27, {479*16}
    v_lshlrev_b32 v4, 1, v0
    buffer_load_ushort v24, v4, {SA_}, 0 offen
    buffer_load_ushort v25, v4, {SA_}, 0 offen offset:1024
    v_mul_u32_u24 v4, 7680, v0
    v_add_u32 v5, {512*7680}, v4
    buffer_load_dwordx4 v[8:11], v4, {SB_}, s26 offen
    buffer_load_dwordx4 v[12:15], v5, {SB_}, s26 offen
    buffer_load_dwordx4 v[16:19], v4, {SB_}, s27 offen
    buffer_load_dwordx4 v[20:23], v5, {SB_}, s27 offen
    """)
    a(f"s_cmp_lg_u32 s{S_WAVE}, 0")
    a("s_cbranch_scc1 L_f_np")
    lp = 'L_f_npl'
    a(f"v_mov_b32 v26, {DBG_NONCE}")
    a("s_mov_b32 s101, 0x40000")
    a.label(lp)
    a(f"buffer_load_dword v27, v26, {SC_}, 0 offen sc1")
    a("s_waitcnt vmcnt(0)")
    a(f"v_readfirstlane_b32 s{FLAGV}, v27")
    a("s_sub_u32 s101, s101, 1")
    a(f"s_cmp_lg_u32 s{FLAGV}, 0")
    a("s_cbranch_scc1 L_f_npd")
    a("s_cmp_lg_u32 s101, 0")
    a(f"s_cbranch_scc1 {lp}")
    a.label("L_f_npd")
    a(f"v_mov_b32 v26, {L_F}")
    a(f"v_mov_b32 v27, s{FLAGV}")
    a("ds_write_b32 v26, v27")
    a.label("L_f_np")
    stamp(a, 2)
    srd(a, SRD_A, P_WQ)
    srd(a, SRD_B, P_X)
    for q5 in range(5):
        a(f"v_add_u32 v6, {64*q5}, v1")
        a(f"v_mul_u32_u24 v7, 6554, v6")
        a(f"v_lshrrev_b32 v7, 16, v7")
        a(f"v_mul_u32_u24 v26, 10, v7")
        a(f"v_sub_u32 v6, v6, v26")
        a(f"v_mul_u32_u24 v7, 1280, v7")
        a(f"v_lshl_add_u32 v{44+q5}, v6, 4, v7")
    a(f"s_mul_i32 s34, s{S_J}, 160")
    for i in range(3):
        a(f"s_add_u32 s24, s{S_WAVE}, {8*i}")
        a(f"s_mul_i32 s25, s24, 40960")
        a(f"s_add_u32 s25, s25, s34")
        a(f"s_mul_i32 s26, s24, 5120")
        a(f"s_cmp_lt_u32 s24, 20")
        a(f"s_cselect_b32 s26, s26, {L_DUMMY}")
        a(f"s_cselect_b32 s27, 1024, 0")
        for q5 in range(5):
            a(f"s_mov_b32 m0, s26")
            a(f"s_add_u32 s26, s26, s27")
            a(f"buffer_load_dwordx4 v{44+q5}, {SA_}, s25 offen lds")
    a(f"""
    v_lshrrev_b32 v6, 2, v1
    v_and_b32 v7, 3, v1
    v_bfe_u32 v26, v6, 1, 2
    v_xor_b32 v7, v7, v26
    v_mul_u32_u24 v6, 1280, v6
    v_lshl_add_u32 v49, v7, 4, v6
    s_mul_i32 s35, s{ROW0}, 1280
    """)
    def xdma(nper, i, s0, lbase):
        a(f"s_add_u32 s24, s{S_WAVE}, {8*i}")
        sdivmod(a, 25, 26, 24, nper)
        a(f"s_mul_i32 s25, s25, {16*1280}")
        a(f"s_lshl_b32 s26, s26, 6")
        a(f"s_add_u32 s25, s25, s26")
        a(f"s_add_u32 s25, s25, s35")
        if s0: a(f"s_add_u32 s25, s25, {64*s0}")
        a(f"s_lshl_b32 s24, s24, 10")
        a(f"s_add_u32 m0, s24, {lbase}")
        a("s_nop 0")
        a(f"buffer_load_dwordx4 v49, {SB_}, s25 offen lds")
    for i in range(7): xdma(14, i, 0, L_STG)
    stamp(a, 3)
    a("s_waitcnt vmcnt(22)")
    stamp(a, 4)
    for r in (24, 25): a(f"v_lshlrev_b32 v{r}, 16, v{r}")
    for r, t in ((24, 26), (25, 27)): a(f"v_mul_f32 v{t}, 0xbfb8aa3b, v{r}")
    for t in (26, 27): a(f"v_exp_f32 v{t}, v{t}")
    a("s_nop 0")
    for t in (26, 27): a(f"v_add_f32 v{t}, 1.0, v{t}")
    for t in (26, 27): a(f"v_rcp_f32 v{t}, v{t}")
    a("s_nop 0")
    for r, t in ((24, 26), (25, 27)): a(f"v_mul_f32 v{r}, v{r}, v{t}")
    a("v_cvt_pk_bf16_f32 v26, v24, v25")
    a("v_lshlrev_b32 v24, 16, v26")
    a("v_and_b32 v25, 0xffff0000, v26")
    for jb, (r1, r2, acc) in enumerate(((8, 12, 28), (16, 20, 36))):
        for e in range(4):
            a(f"v_lshlrev_b32 v26, 16, v{r1+e}")
            a(f"v_and_b32 v27, 0xffff0000, v{r1+e}")
            a(f"v_mul_f32 v{acc+2*e}, v24, v26")
            a(f"v_mul_f32 v{acc+2*e+1}, v24, v27")
            a(f"v_lshlrev_b32 v26, 16, v{r2+e}")
            a(f"v_and_b32 v27, 0xffff0000, v{r2+e}")
            a(f"v_fmac_f32 v{acc+2*e}, v25, v26")
            a(f"v_fmac_f32 v{acc+2*e+1}, v25, v27")
    wave_reduce_add_dpp(a, list(range(28, 44)))
    a(f"""
    s_lshl_b32 s28, s{S_WAVE}, 6
    s_add_u32 s28, s28, {L_F + 64}
    v_mov_b32 v6, s28
    v_cmp_eq_u32 vcc, 63, v1
    s_and_saveexec_b64 s[30:31], vcc
    ds_write_b128 v6, v[28:31]
    ds_write_b128 v6, v[32:35] offset:16
    ds_write_b128 v6, v[36:39] offset:32
    ds_write_b128 v6, v[40:43] offset:48
    s_mov_b64 exec, s[30:31]
    s_waitcnt lgkmcnt(0)
    s_barrier
    v_mov_b32 v6, {L_F}
    ds_read_b32 v7, v6
    s_cmp_lg_u32 s{S_WAVE}, 0
    s_cbranch_scc1 L_f_m1
    v_lshlrev_b32 v6, 2, v1
    v_add_u32 v6, {L_F + 64}, v6
    """)
    for w in range(8): a(f"ds_read_b32 v{28+w}, v6 offset:{64*w}")
    a("s_waitcnt lgkmcnt(0)")
    for w in range(1, 8): a(f"v_add_f32 v28, v28, v{28+w}")
    a(f"""
    v_cvt_pk_bf16_f32 v28, v28, v28
    v_lshlrev_b32 v28, 16, v28
    v_mov_b32 v29, s{FLAGV}
    v_and_b32 v6, 7, v1
    v_lshlrev_b32 v6, 3, v6
    s_lshl_b32 s26, s32, 6
    s_lshl_b32 s27, s33, 6
    v_mov_b32 v8, s26
    v_mov_b32 v9, s27
    v_cmp_gt_u32 vcc, 8, v1
    s_nop 1
    v_cndmask_b32 v8, v9, v8, vcc
    v_add_u32 v6, v6, v8
    v_cmp_gt_u32 vcc, {480*64}, v6
    v_cmp_gt_u32 s[26:27], 16, v1
    s_and_b64 vcc, vcc, s[26:27]
    s_and_saveexec_b64 s[30:31], vcc
    s_mov_b32 s34, {WS_MODT}
    buffer_store_dwordx2 v[28:29], v6, {SWS}, s34 offen sc1
    s_mov_b64 exec, s[30:31]
    """)
    a(f"""
    s_and_b32 s26, s{FLAGV}, 0xfffffff0
    s_or_b32 s26, s26, s4
    v_mov_b32 v8, s26
    s_lshl_b32 s26, s{S_X}, 5
    s_add_u32 s26, s26, s{S_T}
    s_lshl_b32 s26, s26, 2
    s_add_u32 s26, s26, {WS_XC}
    v_mov_b32 v9, 0
    s_mov_b64 exec, 1
    buffer_store_dword v8, v9, {SWS}, s26 offen sc1
    s_mov_b64 exec, -1
    """)
    a.label("L_f_m1")
    a("s_waitcnt lgkmcnt(0)")
    a(f"v_readfirstlane_b32 s{FLAGV}, v7")
    a(f"""
    s_cmp_lg_u32 s{S_WAVE}, 1
    s_cbranch_scc1 L_f_z
    v_mov_b32 v8, 0
    v_mov_b32 v9, 0
    v_mov_b32 v10, 0
    v_mov_b32 v11, 0
    v_lshlrev_b32 v6, 4, v1
    s_cmp_ge_u32 s2, 16
    s_cbranch_scc1 L_f_z1
    s_lshl_b32 s26, s2, 10
    s_add_u32 s26, s26, {WS_CV}
    buffer_store_dwordx4 v[8:11], v6, {SWS}, s26 offen sc1
    """)
    a.label("L_f_z1")
    a(f"""
    s_cmp_ge_u32 s2, 80
    s_cbranch_scc1 L_f_z
    s_mul_i32 s26, s2, {PLANE}
    s_add_u32 s26, s26, {WS_G}
    v_and_b32 v6, 7, v1
    v_lshlrev_b32 v6, 4, v6
    v_lshrrev_b32 v7, 3, v1
    v_mul_u32_u24 v7, {2056*16}, v7
    v_add_u32 v6, v6, v7
    s_mov_b64 exec, 0xffff
    buffer_store_dwordx4 v[8:11], v6, {SWS}, s26 offen sc1
    s_mov_b64 exec, -1
    """)
    a.label("L_f_z")
    stamp(a, 5)
    XF = 8
    a(f"""
    v_lshrrev_b32 v4, 1, v3
    v_bfe_u32 v5, v2, 1, 2
    v_xor_b32 v4, v4, v5
    v_lshlrev_b32 v4, 4, v4
    v_lshl_add_u32 v4, v2, 6, v4
    v_and_b32 v5, 1, v3
    v_lshl_add_u32 v4, v5, 3, v4
    s_mul_i32 s24, s{W_}, {14*1024}
    s_mul_i32 s25, s{KH}, {10*1024}
    s_add_u32 s24, s24, s25
    s_add_u32 s24, s24, {L_STG}
    v_add_u32 v4, s24, v4
    v_xor_b32 v5, 32, v4
    s_waitcnt vmcnt(0)
    s_barrier
    """)
    def xread(q, off):
        a(f"ds_read_b64 v[{XF+4*q}:{XF+4*q+1}], v4 offset:{off}")
        a(f"ds_read_b64 v[{XF+4*q+2}:{XF+4*q+3}], v5 offset:{off}")
    for q in range(4): xread(q, 1024*q)
    a(f"s_cmp_eq_u32 s{KH}, 0")
    a("s_cbranch_scc0 L_f_x1")
    for q in range(4, 10): xread(q, 1024*q)
    a.label("L_f_x1")
    a("s_waitcnt lgkmcnt(0)")
    a("s_barrier")
    for i in range(3): xdma(6, i, 14, L_STG)
    a(f"s_cmp_ge_u32 s{S_J}, 2")
    a("s_cbranch_scc1 L_f_nokv")
    a(f"s_cmp_eq_u32 s{S_J}, 0")
    a(f"s_cselect_b32 s{SRD_A}, s{ptr(P_WK)}, s{ptr(P_WV)}")
    a(f"s_cselect_b32 s{SRD_A+1}, s{ptr(P_WK)+1}, s{ptr(P_WV)+1}")
    a(f"s_mov_b32 s{SRD_A+2}, {640*40}")
    a(f"s_mov_b32 s{SRD_A+3}, 0x00020000")
    a("v_lshlrev_b32 v6, 4, v1")
    for i in range(4):
        a(f"s_add_u32 s24, s{S_WAVE}, {8*i}")
        a(f"s_lshl_b32 s25, s24, 10")
        a(f"s_add_u32 s26, s25, {L_KVW}")
        a(f"s_cmp_lt_u32 s24, 25")
        a(f"s_cselect_b32 s26, s26, {L_DUMMY}")
        a(f"s_mov_b32 m0, s26")
        a("s_nop 0")
        a(f"buffer_load_dwordx4 v6, {SA_}, s25 offen lds")
    a.label("L_f_nokv")
    a("s_waitcnt vmcnt(0)")
    a("s_barrier")
    a(f"s_cmp_eq_u32 s{KH}, 1")
    a("s_cbranch_scc0 L_f_x2")
    a(f"s_mul_i32 s24, s{W_}, {14*1024 - 6*1024}")
    a(f"s_add_u32 s24, s24, {10*1024}")
    a("v_subrev_u32 v4, s24, v4")
    a("v_xor_b32 v5, 32, v4")
    for q in range(4, 10): xread(q, 1024*(q-4))
    a("s_waitcnt lgkmcnt(0)")
    a.label("L_f_x2")
    stamp(a, 6)
    a("v_mov_b32 v56, 0"); a("v_mov_b32 v57, 0"); a("v_mov_b32 v58, 0"); a("v_mov_b32 v59, 0")
    a("v_mov_b32 v60, 0x3f803f80")
    for r in range(40):
        a(f"v_dot2c_f32_bf16 v{56 + 2*(r&1)}, v{XF+r}, v60")
        a(f"v_dot2c_f32_bf16 v{57 + 2*(r&1)}, v{XF+r}, v{XF+r}")
    a("s_nop 2")
    a("v_add_f32 v56, v56, v58"); a("v_add_f32 v57, v57, v59")
    reduce_g(a, [56, 57], [58, 59])
    a(f"""
    s_lshl_b32 s27, s{S_WAVE}, 7
    s_add_u32 s27, s27, {L_F + 1024}
    v_lshl_add_u32 v6, v2, 3, s27
    ds_write_b64 v6, v[56:57]
    s_xor_b32 s28, s{S_WAVE}, 4
    s_lshl_b32 s28, s28, 7
    s_add_u32 s28, s28, {L_F + 1024}
    v_lshl_add_u32 v7, v2, 3, s28
    s_waitcnt lgkmcnt(0)
    s_barrier
    ds_read_b64 v[58:59], v7
    s_waitcnt lgkmcnt(0)
    v_add_f32 v56, v56, v58
    v_add_f32 v57, v57, v59
    v_mul_f32 v56, 0x3acccccd, v56
    v_mul_f32 v57, 0x3acccccd, v57
    v_fma_f32 v57, -v56, v56, v57
    v_add_f32 v57, 0x3727c5ac, v57
    v_rsq_f32 v57, v57
    s_nop 0
    v_mul_f32 v56, v56, v57
    v_sub_f32 v56, 0, v56
    """)
    XN = 64
    for r in range(40):
        a(f"v_lshlrev_b32 v{XN+2*r}, 16, v{XF+r}")
        a(f"v_and_b32 v{XN+2*r+1}, 0xffff0000, v{XF+r}")
    for r in range(80):
        a(f"v_fma_f32 v{XN+r}, v{XN+r}, v57, v56")
    stamp(a, 7)
    a(f"""
    s_cmp_ge_u32 s{S_WAVE}, 5
    s_cbranch_scc1 L_f_mp
    v_lshlrev_b32 v6, 4, v0
    """)
    poll_generic(a, 6, 8, f"s28", [9, 11], 4) if False else None
    a(f"s_mov_b32 s28, {WS_MODT}")
    poll_generic(a, 6, 8, "s28", [9, 11], 4)
    a(f"s_mov_b32 s28, {WS_MODT + 640*8}")
    poll_generic(a, 6, 12, "s28", [13, 15], 4)
    a(f"""
    v_add_f32 v12, 1.0, v12
    v_add_f32 v14, 1.0, v14
    v_cvt_pk_bf16_f32 v12, v12, v14
    v_and_b32 v13, 0xffff0000, v12
    v_lshlrev_b32 v12, 16, v12
    v_mov_b32 v9, v10
    v_lshlrev_b32 v6, 3, v0
    v_add_u32 v6, {L_GA}, v6
    ds_write_b64 v6, v[12:13]
    ds_write_b64 v6, v[8:9] offset:2560
    s_waitcnt lgkmcnt(0)
    """)
    a.label("L_f_mp")
    a("s_barrier")
    stamp(a, 8)
    ACC = 144
    WF = (172, 200)
    GSB = (228, 240)
    for r in range(28): a(f"v_mov_b32 v{ACC+r}, 0")
    a(f"""
    v_lshrrev_b32 v6, 2, v2
    v_lshl_add_u32 v6, v3, 2, v6
    v_and_b32 v7, 3, v2
    v_and_b32 v48, 1, v7
    v_mul_u32_u24 v48, 40, v48
    v_lshrrev_b32 v49, 1, v7
    v_lshl_add_u32 v48, v49, 4, v48
    v_mul_u32_u24 v49, 40, v7
    v_add_u32 v49, 32, v49
    v_mul_u32_u24 v50, 160, v6
    s_mul_i32 s24, s{KH}, {10*5120}
    v_add_u32 v50, s24, v50
    v_add_u32 v48, v48, v50
    v_add_u32 v49, v49, v50
    v_mul_u32_u24 v50, 40, v6
    v_lshl_add_u32 v50, v7, 3, v50
    s_mul_i32 s24, s{KH}, {10*1280}
    s_add_u32 s24, s24, {L_KVW}
    v_add_u32 v50, s24, v50
    s_mul_i32 s24, s{KH}, 1280
    s_add_u32 s24, s24, {L_GA}
    v_lshl_add_u32 v51, v3, 4, s24
    """)
    def wread(q, kv):
        b = WF[q & 1]
        o = q * 5120
        for tt, off in enumerate((0, 8, 80, 88)):
            a(f"ds_read_b64_tr_b16 v[{b+4*tt}:{b+4*tt+1}], v48 offset:{o+off}")
            a(f"ds_read_b64_tr_b16 v[{b+4*tt+2}:{b+4*tt+3}], v48 offset:{o+off+2560}")
        a(f"ds_read_b64_tr_b16 v[{b+16}:{b+17}], v49 offset:{o}")
        a(f"ds_read_b64_tr_b16 v[{b+18}:{b+19}], v49 offset:{o+2560}")
        if kv:
            o2 = q * 1280
            for tt in range(2):
                a(f"ds_read_b64_tr_b16 v[{b+20+4*tt}:{b+21+4*tt}], v50 offset:{o2+32*tt}")
                a(f"ds_read_b64_tr_b16 v[{b+22+4*tt}:{b+23+4*tt}], v50 offset:{o2+32*tt+640}")
    def modulate(q):
        gb = 228
        a(f"ds_read_b128 v[{gb}:{gb+3}], v51 offset:{128*q}")
        a(f"ds_read_b128 v[{gb+4}:{gb+7}], v51 offset:{128*q+64}")
        a(f"ds_read_b128 v[{gb+8}:{gb+11}], v51 offset:{128*q+2560}")
        a(f"ds_read_b128 v[{gb+12}:{gb+15}], v51 offset:{128*q+2560+64}")
        a("s_waitcnt lgkmcnt(0)")
        for e in range(8):
            a(f"v_fma_f32 v{XN+8*q+e}, v{XN+8*q+e}, v{gb+e}, v{gb+8+e}")
        for e in range(4):
            a(f"v_cvt_pk_bf16_f32 v{XF+4*q+e}, v{XN+8*q+2*e}, v{XN+8*q+2*e+1}")
    def body(mode):
        for q in range(10):
            wread(q, mode != 0)
            modulate(q)
            b = WF[q & 1]; h = XF + 4*q
            a("s_nop 1")
            for tt in range(5):
                a(CHN.mf16(ACC + 4*tt, b + 4*tt, h))
            if mode == 1:
                for tt in range(2): a(CHN.mf16(ACC + 20 + 4*tt, b + 20 + 4*tt, h))
            elif mode == 2:
                for tt in range(2): a(CHN.mf16(ACC + 20 + 4*tt, h, b + 20 + 4*tt))
    a(f"s_cmp_eq_u32 s{S_J}, 0"); a("s_cbranch_scc1 L_f_gK")
    a(f"s_cmp_eq_u32 s{S_J}, 1"); a("s_cbranch_scc1 L_f_gV")
    body(0); a("s_branch L_f_gE")
    a.label("L_f_gK"); body(1); a("s_branch L_f_gE")
    a.label("L_f_gV"); body(2)
    a.label("L_f_gE")
    a("s_barrier")
    a(f"""
    s_mul_i32 s27, s{S_WAVE}, 7168
    v_lshl_add_u32 v6, v1, 4, s27
    s_xor_b32 s28, s{S_WAVE}, 4
    s_mul_i32 s28, s28, 7168
    v_lshl_add_u32 v7, v1, 4, s28
    s_nop 4
    """)
    for t in range(7): a(f"ds_write_b128 v6, v[{ACC+4*t}:{ACC+4*t+3}] offset:{1024*t}")
    a("s_waitcnt lgkmcnt(0)")
    a("s_barrier")
    for t in range(7): a(f"ds_read_b128 v[{WF[0]+4*t}:{WF[0]+4*t+3}], v7 offset:{1024*t}")
    a("s_waitcnt lgkmcnt(0)")
    for r in range(28): a(f"v_add_f32 v{ACC+r}, v{ACC+r}, v{WF[0]+r}")
    stamp(a, 9)
    a(f"s_cmp_eq_u32 s{KH}, 0"); a("s_cbranch_scc0 L_f_kvd")
    a(f"s_cmp_ge_u32 s{S_J}, 2"); a("s_cbranch_scc1 L_f_kvd")
    A0, A1 = ACC + 20, ACC + 24
    a(f"""
    s_lshr_b32 s24, s{M_}, 1
    s_mul_i32 s24, s24, {KVT}
    s_add_u32 s24, s24, {WS_KV}
    s_and_b32 s25, s{M_}, 1
    v_cvt_pk_bf16_f32 v28, v{A0}, v{A0+1}
    v_cvt_pk_bf16_f32 v29, v{A0+2}, v{A0+3}
    v_cvt_pk_bf16_f32 v30, v{A1}, v{A1+1}
    v_cvt_pk_bf16_f32 v31, v{A1+2}, v{A1+3}
    v_mov_b32 v36, 0x3f803f80
    v_mov_b32 v37, 0x00003f80
    v_mov_b32 v38, 0x7fffffff
    s_cmp_eq_u32 s{S_J}, 1
    s_cbranch_scc1 L_f_v
    """)
    a(f"""
    s_lshl_b32 s26, s25, 4
    v_add_u32 v33, s26, v2
    v_lshrrev_b32 v34, 1, v3
    v_lshl_add_u32 v34, v34, 5, v33
    v_lshlrev_b32 v34, 4, v34
    v_and_b32 v35, 1, v3
    v_lshl_add_u32 v34, v35, 3, v34
    buffer_store_dwordx2 v[28:29], v34, {SWS}, s24 offen sc1
    v_cmp_eq_u32 vcc, 1, v3
    v_lshl_add_u32 v34, v3, 5, v33
    v_lshlrev_b32 v34, 3, v34
    v_cndmask_b32 v30, v30, v36, vcc
    v_cndmask_b32 v31, v31, v37, vcc
    v_cmp_gt_u32 vcc, 2, v3
    v_mul_f32 v32, v{A0}, v{A0}
    v_fmac_f32 v32, v{A0+1}, v{A0+1}
    v_cndmask_b32 v34, v38, v34, vcc
    buffer_store_dwordx2 v[30:31], v34, {SWS}, s24 offen offset:{KV_KT} sc1
    v_fmac_f32 v32, v{A0+2}, v{A0+2}
    v_fmac_f32 v32, v{A0+3}, v{A0+3}
    v_mul_f32 v39, v{A1}, v{A1}
    v_fmac_f32 v39, v{A1+1}, v{A1+1}
    v_fmac_f32 v39, v{A1+2}, v{A1+2}
    v_fmac_f32 v39, v{A1+3}, v{A1+3}
    v_cmp_eq_u32 vcc, 0, v3
    s_nop 1
    v_cndmask_b32 v39, 0, v39, vcc
    v_add_f32 v32, v32, v39
    """)
    reduce_g(a, [32], [40])
    for st_ in (1, 2, 4, 8):
        a("s_nop 1")
        a(f"v_max_f32_dpp v32, v32, v32 row_shr:{st_} row_mask:0xf bank_mask:0xf")
    a(f"""
    s_lshl_b32 s27, s{M_}, 2
    s_add_u32 s27, s27, {WS_KN}
    v_mov_b32 v34, 0
    v_cmp_eq_u32 vcc, 15, v1
    s_and_saveexec_b64 s[30:31], vcc
    buffer_store_dword v32, v34, {SWS}, s27 offen sc1
    s_mov_b64 exec, s[30:31]
    s_mov_b32 s28, 0
    s_branch L_f_kvf
    """)
    a.label("L_f_v")
    a(f"""
    v_and_b32 v34, 1, v3
    v_lshl_add_u32 v34, v34, 5, v2
    v_lshlrev_b32 v34, 4, v34
    v_lshrrev_b32 v35, 1, v3
    v_lshl_add_u32 v34, v35, 3, v34
    s_lshl_b32 s26, s25, 10
    s_add_u32 s26, s26, s24
    buffer_store_dwordx2 v[28:29], v34, {SWS}, s26 offen offset:{KV_V0} sc1
    v_cmp_eq_u32 vcc, 4, v2
    v_add_u32 v34, 256, v34
    s_nop 0
    v_cndmask_b32 v30, v30, v36, vcc
    v_cndmask_b32 v31, v31, v36, vcc
    v_cmp_gt_u32 vcc, 5, v2
    s_nop 1
    v_cndmask_b32 v34, v38, v34, vcc
    buffer_store_dwordx2 v[30:31], v34, {SWS}, s26 offen offset:{KV_V0} sc1
    s_mov_b32 s28, 4
    """)
    a.label("L_f_kvf")
    a(f"""
    s_lshl_b32 s27, s{M_}, 3
    s_add_u32 s27, s27, s28
    s_add_u32 s27, s27, {WS_FLAGS + FL_KV*4096}
    s_waitcnt vmcnt(0)
    v_mov_b32 v34, 0
    v_mov_b32 v35, s{FLAGV}
    s_mov_b64 exec, 1
    buffer_store_dword v35, v34, {SWS}, s27 offen sc1
    s_mov_b64 exec, -1
    """)
    a.label("L_f_kvd")
    for r in range(20): a(f"v_mul_f32 v{ACC+r}, {hex(f32bits(QSCALE))}, v{ACC+r}")
    QAM, QBM, QAT, QBT = AT.QAM, AT.QBM, AT.QAT, AT.QBT
    for t, d in enumerate((QAM, QAM+2, QBM, QBM+2, QAT)):
        a(f"v_cvt_pk_bf16_f32 v{d}, v{ACC+4*t}, v{ACC+4*t+1}")
        a(f"v_cvt_pk_bf16_f32 v{d+1}, v{ACC+4*t+2}, v{ACC+4*t+3}")
    a(f"v_mov_b32 v{QBT}, v{QAT}"); a(f"v_mov_b32 v{QBT+1}, v{QAT+1}"); a("s_nop 1")
    a(f"v_permlane32_swap_b32 v{QAT}, v{QBT}"); a(f"v_permlane32_swap_b32 v{QAT+1}, v{QBT+1}")
    a("s_mov_b32 exec_lo, 0")
    for r in (QAT, QAT+1, QBT, QBT+1): a(f"v_mov_b32 v{r}, 0")
    a("s_mov_b32 exec_lo, -1")
    stamp(a, 10)

def mod2(a):
    a(f"""
    v_mov_b32 v128, 0
    v_mov_b32 v129, {L_SC}
    v_cmp_gt_u32 vcc, 8, v0
    s_and_saveexec_b64 s[30:31], vcc
    v_lshl_add_u32 v129, v0, 2, v129
    ds_write_b32 v129, v128
    s_mov_b64 exec, s[30:31]
    s_waitcnt lgkmcnt(0)
    s_barrier
    s_cmp_ge_u32 s{S_WAVE}, 5
    s_cbranch_scc1 L_m2_b
    v_lshlrev_b32 v128, 4, v0
    s_mov_b32 s28, {WS_MODT + 3*640*8}
    """)
    poll_generic(a, 128, 132, "s28", [133, 135], 4)
    a(f"s_mov_b32 s28, {WS_MODT + 4*640*8}")
    poll_generic(a, 128, 136, "s28", [137, 139], 4)
    a(f"""
    v_add_f32 v136, 1.0, v136
    v_add_f32 v138, 1.0, v138
    v_cvt_pk_bf16_f32 v140, v136, v138
    v_cvt_pk_bf16_f32 v141, v132, v134
    v_lshlrev_b32 v142, 2, v0
    v_add_u32 v142, {L_G16}, v142
    ds_write_b32 v142, v140
    ds_write_b32 v142, v141 offset:1280
    v_lshlrev_b32 v136, 16, v140
    v_and_b32 v137, 0xffff0000, v140
    v_mov_b32 v133, v134
    s_mul_i32 s24, s{S_J}, 40
    v_subrev_u32 v142, s24, v0
    v_cmp_gt_u32 vcc, 40, v142
    v_lshlrev_b32 v142, 3, v142
    v_add_u32 v142, {L_MISC}, v142
    s_and_saveexec_b64 s[30:31], vcc
    ds_write_b64 v142, v[136:137] offset:320
    ds_write_b64 v142, v[132:133] offset:640
    s_mov_b64 exec, s[30:31]
    v_add_f32 v144, v136, v137
    v_mul_f32 v145, v136, v136
    v_fmac_f32 v145, v137, v137
    v_mul_f32 v146, v136, v132
    v_fmac_f32 v146, v137, v133
    v_add_f32 v147, v132, v133
    v_mul_f32 v148, v132, v132
    v_fmac_f32 v148, v133, v133
    """)
    wave_reduce_add_dpp(a, [144, 145, 146, 147, 148])
    a(f"""
    v_mov_b32 v149, {L_SC}
    v_cmp_eq_u32 vcc, 63, v1
    s_and_saveexec_b64 s[30:31], vcc
    ds_add_f32 v149, v144
    ds_add_f32 v149, v145 offset:4
    ds_add_f32 v149, v146 offset:8
    ds_add_f32 v149, v147 offset:12
    ds_add_f32 v149, v148 offset:16
    s_mov_b64 exec, s[30:31]
    s_branch L_m2_e
    """)
    a.label("L_m2_b")
    a(f"""
    s_cmp_eq_u32 s{S_WAVE}, 7
    s_cbranch_scc1 L_m2_e
    s_mul_i32 s24, s{S_J}, 640
    s_cmp_eq_u32 s{S_WAVE}, 5
    s_cselect_b32 s25, {2*640*8}, {5*640*8 & 0xffffffff}
    """.replace(f"s_cselect_b32 s25, {2*640*8}, {5*640*8 & 0xffffffff}", f"s_mov_b32 s25, {5*640*8}\n    s_cselect_b32 s25, {2*640*8}, s25"))
    a(f"""
    s_add_u32 s28, s24, s25
    s_add_u32 s28, s28, {WS_MODT}
    v_lshlrev_b32 v128, 4, v1
    """)
    poll_generic(a, 128, 132, "s28", [133, 135], 4, lanes_mask=40)
    a(f"""
    v_mov_b32 v133, v134
    s_cmp_eq_u32 s{S_WAVE}, 5
    s_cselect_b32 s24, 0, 960
    s_add_u32 s24, s24, {L_MISC}
    v_lshl_add_u32 v142, v1, 3, s24
    s_mov_b32 exec_hi, 0xff
    ds_write_b64 v142, v[132:133]
    s_mov_b64 exec, -1
    """)
    a.label("L_m2_e")
    a("s_waitcnt lgkmcnt(0)")
    a("s_barrier")

P_DST, P_NT, P_JOB, P_KIND = 86, 87, 96, 97
def prep_decode(a):
    GW, Q, R, A_, U = 24, 25, 26, 27, 28
    K0, GS, HS, LD, CB = 32, 33, 34, 35, 36
    SA_ = f"s[{SRD_A}:{SRD_A+3}]"
    a(f"""
    s_lshl_b32 s{GW}, s{S_WAVE}, 8
    s_lshl_b32 s25, s{S_X}, 5
    s_add_u32 s{GW}, s{GW}, s25
    s_add_u32 s{GW}, s{GW}, s{S_T}
    s_mov_b32 s{P_JOB}, s{GW}
    s_cmp_ge_u32 s{GW}, 1232
    s_cbranch_scc1 L_pd_none
    s_mov_b32 s{GS}, 4
    s_mov_b32 s{P_KIND}, 0
    s_mov_b32 s{P_NT}, 5
    s_mov_b32 s{LD}, 1280
    """)
    def pi_params(sreg):
        sdivmod(a, A_, U, sreg, 5)
        lab = a.new_label('L_pi'); lab2 = a.new_label('L_pi')
        a(f"""
        s_cmp_eq_u32 s{U}, 4
        s_cbranch_scc1 {lab}
        s_mul_i32 s{K0}, s{A_}, 160
        s_lshr_b32 s29, s{U}, 1
        s_mul_i32 s29, s29, 80
        s_add_u32 s{K0}, s{K0}, s29
        s_and_b32 s29, s{U}, 1
        s_lshl_b32 s29, s29, 5
        s_add_u32 s{K0}, s{K0}, s29
        s_mov_b32 s{HS}, 16
        s_branch {lab2}
        """)
        a.label(lab)
        a(f"s_mul_i32 s{K0}, s{A_}, 160"); a(f"s_add_u32 s{K0}, s{K0}, 64"); a(f"s_mov_b32 s{HS}, 80")
        a.label(lab2)
    a(f"s_cmp_lt_u32 s{GW}, 160"); a("s_cbranch_scc1 L_pp_wo")
    a(f"s_cmp_lt_u32 s{GW}, 320"); a("s_cbranch_scc1 L_pp_w1")
    a(f"s_cmp_lt_u32 s{GW}, 480"); a("s_cbranch_scc1 L_pp_w2")
    a(f"s_cmp_lt_u32 s{GW}, 800"); a("s_cbranch_scc1 L_pp_w3")
    a(f"s_sub_u32 s{GW}, s{GW}, 800")
    sdivmod(a, Q, R, GW, 54)
    srd(a, SRD_A, P_W4)
    a(f"""
    s_mul_i32 s{CB}, s{Q}, 160
    s_mul_i32 s{P_DST}, s{GW}, 5120
    s_add_u32 s{P_DST}, s{P_DST}, {WS_W4}
    s_cmp_ge_u32 s{R}, 48
    s_cbranch_scc1 L_pp_w4b
    """)
    sdivmod(a, A_, U, R, 3)
    a(f"""
    s_mul_i32 s{K0}, s{A_}, 112
    s_sub_u32 s29, s{A_}, 12
    s_mul_i32 s29, s29, 96
    s_add_u32 s29, s29, 1344
    s_cmp_lt_u32 s{A_}, 12
    s_cselect_b32 s{K0}, s{K0}, s29
    s_lshl_b32 s29, s{U}, 5
    s_add_u32 s{K0}, s{K0}, s29
    s_mov_b32 s{HS}, 16
    s_branch L_pp_go
    """)
    a.label('L_pp_w4b')
    a(f"s_sub_u32 s29, s{R}, 48"); a(f"s_mul_i32 s{K0}, s29, 224"); a(f"s_add_u32 s{K0}, s{K0}, 96"); a(f"s_mov_b32 s{HS}, 112"); a("s_branch L_pp_go")
    a.label('L_pp_wo')
    sdivmod(a, Q, R, GW, 20)
    srd(a, SRD_A, P_WO)
    a(f"""
    s_mul_i32 s{CB}, s{Q}, 160
    s_mul_i32 s{P_DST}, s{GW}, 5120
    s_add_u32 s{P_DST}, s{P_DST}, {WS_WO}
    s_lshl_b32 s{K0}, s{R}, 2
    s_mov_b32 s{P_KIND}, 2
    s_branch L_pp_go
    """)
    for lab, p, ws, base, kind in (('L_pp_w1', P_W1, WS_W1, 160, 1), ('L_pp_w2', P_W2, WS_W2, 320, 0)):
        a.label(lab)
        a(f"s_sub_u32 s{GW}, s{GW}, {base}")
        sdivmod(a, Q, R, GW, 20)
        srd(a, SRD_A, p)
        a(f"s_mul_i32 s{CB}, s{Q}, 160"); a(f"s_mul_i32 s{P_DST}, s{GW}, 5120"); a(f"s_add_u32 s{P_DST}, s{P_DST}, {ws}")
        a(f"s_mov_b32 s{P_KIND}, {kind}")
        pi_params(R)
        a("s_branch L_pp_go")
    a.label('L_pp_w3')
    a(f"s_sub_u32 s{GW}, s{GW}, 480")
    sdivmod(a, Q, R, GW, 20)
    srd(a, SRD_A, P_W3)
    a(f"""
    s_mul_i32 s{CB}, s{Q}, 224
    s_sub_u32 s29, s{Q}, 12
    s_mul_i32 s29, s29, 192
    s_add_u32 s29, s29, {1344*2}
    s_cmp_lt_u32 s{Q}, 12
    s_cselect_b32 s{CB}, s{CB}, s29
    s_mul_i32 s{P_DST}, s{GW}, 7168
    s_add_u32 s{P_DST}, s{P_DST}, {WS_W3}
    s_mov_b32 s{LD}, 3456
    s_mov_b32 s{P_NT}, 7
    s_mov_b32 s{P_KIND}, 3
    """)
    pi_params(R)
    a.label('L_pp_go')
    a(f"s_mov_b32 s88, s{CB}"); a(f"s_mov_b32 s89, s{K0}"); a(f"s_mov_b32 s90, s{HS}")
    T = 160
    a(f"s_mul_i32 s29, s{S_WAVE}, 7168")
    a(f"s_lshl_b32 s30, s{P_NT}, 1")
    a(f"s_movk_i32 s31, 4682"); a(f"s_cmp_eq_u32 s{P_NT}, 5"); a(f"s_cselect_b32 s31, 6554, s31")
    a(f"v_mul_u32_u24 v{T}, s31, v1")
    a(f"v_lshrrev_b32 v{T}, 16, v{T}")
    a(f"v_mul_u32_u24 v{T+1}, s30, v{T}")
    a(f"v_sub_u32 v{T+1}, v1, v{T+1}")
    a(f"v_mul_lo_u32 v{T}, v{T}, s{LD}")
    a(f"v_lshl_add_u32 v{T}, v{T+1}, 4, v{T}")
    a(f"s_lshl_b32 s31, s30, 6")
    a.label('L_pd_none')

def prep_dma(a):
    GW, Q, R, A_, U = 24, 25, 26, 27, 28
    K0, GS, HS, LD, CB = 32, 33, 34, 35, 36
    SA_ = f"s[{SRD_A}:{SRD_A+3}]"
    T = 160
    a(f"s_cmp_ge_u32 s{P_JOB}, 1232"); a("s_cbranch_scc1 L_pp_none")
    a(f"s_mul_i32 s29, s{S_WAVE}, 7168")
    a(f"s_lshl_b32 s31, s{P_NT}, 7")
    a("s_mov_b32 exec_hi, 0xff")
    a(f"s_cmp_eq_u32 s{P_NT}, 5"); a("s_cbranch_scc1 L_pp_ex")
    a("s_mov_b32 exec_hi, 0xffffff")
    a.label("L_pp_ex")
    a(f"s_cmp_eq_u32 s{P_KIND}, 2"); a("s_cbranch_scc1 L_pp_omk")
    a(f"s_mul_i32 s25, s{K0}, s{LD}"); a(f"s_add_u32 s25, s25, s{CB}")
    a(f"s_mul_i32 s26, s{HS}, s{LD}")
    a(f"s_mul_i32 s27, s{GS}, s{LD}")
    for g_ in range(4):
        a("s_mov_b32 m0, s29"); a("s_add_u32 s28, s25, s26")
        a(f"buffer_load_dwordx4 v{T}, {SA_}, s25 offen lds")
        a("s_add_u32 m0, s29, s31"); a("s_add_u32 s25, s25, s27")
        a(f"buffer_load_dwordx4 v{T}, {SA_}, s28 offen lds")
        if g_ < 3:
            a("s_add_u32 s29, s29, s31"); a("s_add_u32 s29, s29, s31")
    a("s_branch L_pp_fin")
    a.label("L_pp_omk")
    a("s_mov_b32 s37, 0")
    a.label("L_pp_loop")
    a("s_lshr_b32 s25, s37, 1")
    a("s_and_b32 s26, s37, 1")
    a(f"s_add_u32 s25, s25, s{K0}")
    a(f"s_mul_hi_u32 s27, s25, {magic(10)}")
    a("s_mul_i32 s28, s27, 10")
    a("s_sub_u32 s28, s25, s28")
    a("s_mul_i32 s27, s27, 80")
    a("s_cmp_lt_u32 s28, 8"); a("s_cbranch_scc0 L_pp_om2")
    a("s_lshr_b32 s25, s28, 2"); a("s_lshl_b32 s25, s25, 1"); a("s_bfe_u32 s38, s28, 0x10001"); a("s_add_u32 s25, s25, s38")
    a("s_mul_i32 s25, s25, 20"); a("s_and_b32 s38, s28, 1"); a("s_lshl_b32 s38, s38, 2"); a("s_add_u32 s25, s25, s38")
    a("s_lshl_b32 s26, s26, 3"); a("s_add_u32 s25, s25, s26"); a("s_add_u32 s25, s25, s27")
    a("s_branch L_pp_k")
    a.label("L_pp_om2")
    a("s_sub_u32 s28, s28, 8"); a("s_lshl_b32 s26, s26, 1"); a("s_add_u32 s28, s28, s26"); a("s_mul_i32 s28, s28, 20")
    a("s_add_u32 s25, s28, 16"); a("s_add_u32 s25, s25, s27")
    a.label("L_pp_k")
    a(f"s_mul_i32 s25, s25, s{LD}")
    a(f"s_add_u32 s25, s25, s{CB}")
    a("s_mov_b32 m0, s29")
    a("s_add_u32 s29, s29, s31")
    a(f"buffer_load_dwordx4 v{T}, {SA_}, s25 offen lds")
    a("s_add_u32 s37, s37, 1")
    a("s_cmp_lt_u32 s37, 8"); a("s_cbranch_scc1 L_pp_loop")
    a.label("L_pp_fin")
    a("s_mov_b64 exec, -1")
    a.label('L_pp_none')

def prep_finish(a):
    done = a.new_label('L_pf_done')
    T = 128
    a(f"s_cmp_ge_u32 s{P_JOB}, 1232"); a(f"s_cbranch_scc1 {done}")
    a(f"""
    s_mul_i32 s29, s{S_WAVE}, 7168
    s_lshl_b32 s30, s{P_NT}, 5
    v_lshlrev_b32 v{T}, 3, v3
    v_lshrrev_b32 v{T+1}, 2, v2
    v_add_u32 v{T}, v{T}, v{T+1}
    v_mul_u32_u24 v{T}, s30, v{T}
    v_add_u32 v{T}, s29, v{T}
    v_and_b32 v{T+1}, 3, v2
    v_lshl_add_u32 v{T}, v{T+1}, 3, v{T}
    s_lshl_b32 s31, s30, 2
    v_add_u32 v{T+1}, s31, v{T}
    v_lshlrev_b32 v{T+2}, 4, v1
    """)
    F = 136
    for tt in range(7):
        a(f"ds_read_b64_tr_b16 v[{F+4*tt}:{F+4*tt+1}], v{T} offset:{32*tt}")
        a(f"ds_read_b64_tr_b16 v[{F+4*tt+2}:{F+4*tt+3}], v{T+1} offset:{32*tt}")
    a(f"""
    v_lshlrev_b32 v{T+3}, 3, v3
    s_lshl_b32 s31, s89, 1
    v_add_u32 v{T+3}, s31, v{T+3}
    v_add_u32 v{T+3}, {L_G16}, v{T+3}
    s_lshl_b32 s31, s90, 1
    v_add_u32 v{T+4}, s31, v{T+3}
    ds_read_b64 v[164:165], v{T+3}
    ds_read_b64 v[166:167], v{T+4}
    ds_read_b64 v[168:169], v{T+3} offset:1280
    ds_read_b64 v[170:171], v{T+4} offset:1280
    s_waitcnt lgkmcnt(0)
    """)
    for tt in range(7):
        if tt == 5:
            lab5 = a.new_label('L_pf5')
            a(f"s_cmp_eq_u32 s{P_NT}, 5"); a(f"s_cbranch_scc1 {lab5}")
        a(f"s_add_u32 s31, s{P_DST}, {1024*tt}")
        a(f"buffer_store_dwordx4 v[{F+4*tt}:{F+4*tt+3}], v{T+2}, {SWS}, s31 offen sc1")
    a.label(lab5)
    a(f"s_cmp_eq_u32 s{P_KIND}, 1"); a("s_cbranch_scc1 L_pf_w1")
    a(f"s_cmp_eq_u32 s{P_KIND}, 3"); a(f"s_cbranch_scc0 {done}")
    ones = 172
    a(f"v_mov_b32 v{ones}, 0x3f803f80")
    for tt in range(7):
        a(f"v_mov_b32 v{176+tt}, 0")
    for e in range(4):
        for tt in range(7):
            a(f"v_dot2c_f32_bf16 v{176+tt}, v{F+4*tt+e}, v{ones}")
    a("s_nop 2")
    reduce_g(a, [176+tt for tt in range(7)], [184+tt for tt in range(7)])
    a(f"""
    s_lshl_b32 s31, s88, 1
    s_add_u32 s31, s31, {WS_CV + CV_S3}
    v_lshlrev_b32 v{T}, 2, v2
    s_mov_b64 exec, 0xffff
    """)
    for tt in range(7):
        if tt == 6:
            a(f"s_cmp_ge_u32 s88, {1344*2}"); a("s_cbranch_scc1 L_pf_w3e")
        a(f"buffer_atomic_add_f32 v{176+tt}, v{T}, {SWS}, s31 offen offset:{64*tt}")
    a.label("L_pf_w3e")
    a("s_mov_b64 exec, -1")
    a(f"s_branch {done}")
    a.label("L_pf_w1")
    a(f"v_mov_b32 v{ones}, 0x3f803f80")
    for r in range(15): a(f"v_mov_b32 v{176+r}, 0")
    for e in range(4):
        for tt in range(5):
            a(f"v_dot2c_f32_bf16 v{176+tt}, v{F+4*tt+e}, v{164+e}")
            a(f"v_dot2c_f32_bf16 v{181+tt}, v{F+4*tt+e}, v{168+e}")
            a(f"v_dot2c_f32_bf16 v{186+tt}, v{F+4*tt+e}, v{ones}")
    a("s_nop 2")
    reduce_g(a, [176+r for r in range(15)], [192+r for r in range(15)])
    a(f"""
    s_lshl_b32 s31, s88, 1
    s_add_u32 s31, s31, {WS_CV}
    v_lshlrev_b32 v{T}, 2, v2
    s_mov_b64 exec, 0xffff
    """)
    for vec in range(3):
        a(f"s_add_u32 s30, s31, {2560*vec}")
        for tt in range(5):
            a(f"buffer_atomic_add_f32 v{176+5*vec+tt}, v{T}, {SWS}, s30 offen offset:{64*tt}")
    a("s_mov_b64 exec, -1")
    a.label(done)

def prep_flag(a):
    done = a.new_label('L_pfl')
    a(f"s_cmp_ge_u32 s{P_JOB}, 1232"); a(f"s_cbranch_scc1 {done}")
    a(f"""
    s_lshl_b32 s24, s{P_JOB}, 2
    s_add_u32 s24, s24, {WS_FLAGS + FL_P*4096}
    v_mov_b32 v128, 0
    v_mov_b32 v129, s{FLAGV}
    s_mov_b64 exec, 1
    buffer_store_dword v129, v128, {SWS}, s24 offen sc1
    s_mov_b64 exec, -1
    """)
    if os.environ.get('RB', '1') == '1':
        a("v_lshlrev_b32 v130, 4, v1")
        for tt in range(7):
            if tt == 5:
                a(f"s_cmp_eq_u32 s{P_NT}, 5"); a(f"s_cbranch_scc1 {done}")
            a(f"s_add_u32 s31, s{P_DST}, {1024*tt}")
            a(f"buffer_load_dwordx4 v[{136+4*tt}:{139+4*tt}], v130, {SWS}, s31 offen")
    a.label(done)

LG, LSTEP, LLEFT, LPH, LSL, LN, LW7 = 88, 89, 90, 91, 92, 93, 94
LVA, LVB, LVB25, LVL = 200, 201, 202, 203
def loader_init(a):
    a(f"""
    s_sub_u32 s24, s{S_WAVE}, 4
    s_mul_i32 s{LW7}, s24, 7168
    v_lshlrev_b32 v{LVA}, 4, v1
    v_mov_b32 v{LVB25}, 0x7ffffff0
    s_cmp_eq_u32 s24, 3
    s_cselect_b64 vcc, -1, 0
    v_mov_b32 v{LVL}, v{LVA}
    s_nop 0
    v_cndmask_b32 v{LVB25}, v{LVA}, v{LVB25}, vcc
    v_mov_b32 v{LVB}, v{LVB25}
    s_mul_i32 s{LG}, s{S_J}, 102400
    s_add_u32 s{LG}, s{LG}, {WS_WO}
    s_mov_b32 s{LSTEP}, 25600
    s_mov_b32 s{LLEFT}, 4
    s_mov_b32 s{LPH}, 0
    s_mov_b32 s{LSL}, 0
    """)
def prep_poll(a, first_job_expr_reg, n):
    a(f"s_lshl_b32 s28, s{first_job_expr_reg}, 2")
    a(f"s_add_u32 s28, s28, {WS_FLAGS + FL_P*4096}")
    a("v_lshlrev_b32 v204, 2, v1")
    poll_generic(a, 204, 205, "s28", [205], 1, lanes_mask=n)

def loader_issue(a):
    SLOT = CHN.SLOT
    a(f"s_add_u32 s24, s{LSL}, s{LW7}")
    a(f"s_add_u32 s25, s{LG}, s{LW7}")
    a(f"s_mov_b32 m0, s24")
    a(f"s_add_u32 s26, s25, 4096")
    for q in range(4):
        a(f"buffer_load_dwordx4 v{LVA}, {SWS}, s25 offen offset:{1024*q} lds")
    a(f"s_add_u32 m0, s24, 4096")
    a(f"s_add_u32 s{LG}, s{LG}, s{LSTEP}")
    for q in range(3):
        a(f"buffer_load_dwordx4 v{LVB}, {SWS}, s26 offen offset:{1024*q} lds")
    a(f"s_add_u32 s{LSL}, s{LSL}, {SLOT}")
    a(f"s_cmp_eq_u32 s{LSL}, {5*SLOT}")
    a(f"s_cselect_b32 s{LSL}, 0, s{LSL}")
    lab = a.new_label('L_ld_sw')
    a(f"s_sub_u32 s{LLEFT}, s{LLEFT}, 1")
    a(f"s_cmp_lg_u32 s{LLEFT}, 0")
    a(f"s_cbranch_scc1 {lab}")
    a(f"s_add_u32 s{LPH}, s{LPH}, 1")
    l1, l2, l3, l4 = (a.new_label('L_ld_p') for _ in range(4))
    a(f"s_cmp_eq_u32 s{LPH}, 1"); a(f"s_cbranch_scc1 {l1}")
    a(f"s_cmp_eq_u32 s{LPH}, 2"); a(f"s_cbranch_scc1 {l2}")
    a(f"s_cmp_eq_u32 s{LPH}, 3"); a(f"s_cbranch_scc1 {l3}")
    a(f"s_cmp_eq_u32 s{LPH}, 4"); a(f"s_cbranch_scc1 {l4}")
    a(f"v_mov_b32 v{LVA}, 0x7ffffff0"); a(f"v_mov_b32 v{LVB}, 0x7ffffff0"); a(f"s_mov_b32 s{LLEFT}, 100"); a(f"s_mov_b32 s{LSTEP}, 0"); a(f"s_branch {lab}")
    for l, ws, j0 in ((l1, WS_W1, 160), (l2, WS_W2, 320)):
        a.label(l)
        a(f"s_mul_i32 s{LG}, s{S_J}, 102400"); a(f"s_add_u32 s{LG}, s{LG}, {ws}"); a(f"s_mov_b32 s{LLEFT}, 4"); a(f"s_branch {lab}")
    a.label(l3)
    a(f"s_and_b32 s24, s{S_T}, 15"); a(f"s_mul_i32 s{LG}, s24, 143360"); a(f"s_add_u32 s{LG}, s{LG}, {WS_W3}")
    a(f"s_mov_b32 s{LSTEP}, 28672"); a(f"s_mov_b32 s{LLEFT}, 5"); a(f"v_mov_b32 v{LVB}, v{LVL}"); a(f"s_branch {lab}")
    a.label(l4)
    a(f"s_mul_i32 s{LG}, s{S_J}, 276480"); a(f"s_add_u32 s{LG}, s{LG}, {WS_W4}")
    a(f"s_mov_b32 s{LSTEP}, 25600"); a(f"s_mov_b32 s{LLEFT}, 11"); a(f"v_mov_b32 v{LVB}, v{LVB25}")
    a.label(lab)

def check_or_poll(a, regs, reload_fn):
    lp = a.new_label('L_cp'); dn = a.new_label('L_cpd')
    a("s_mov_b32 s101, 0x40000")
    a.label(lp)
    first = True
    for r in regs:
        if first:
            a(f"v_cmp_ne_u32 vcc, s{FLAGV}, v{r}"); first = False
        else:
            a(f"v_cmp_ne_u32 s[26:27], s{FLAGV}, v{r}"); a("s_or_b64 vcc, vcc, s[26:27]")
    a("s_sub_u32 s101, s101, 1")
    a("s_cmp_eq_u64 vcc, 0")
    a(f"s_cbranch_scc1 {dn}")
    a("s_cmp_eq_u32 s101, 0")
    a(f"s_cbranch_scc1 {dn}")
    a("s_sleep 4")
    reload_fn()
    a("s_waitcnt vmcnt(0)")
    a(f"s_branch {lp}")
    a.label(dn)

def mod2_loads(a):
    l1 = a.new_label('L_m2l'); l2 = a.new_label('L_m2l')
    a(f"s_cmp_ge_u32 s{S_WAVE}, 5"); a(f"s_cbranch_scc1 {l1}")
    a(f"v_lshlrev_b32 v128, 4, v0")
    a(f"s_mov_b32 s28, {WS_MODT + 3*640*8}")
    a(f"buffer_load_dwordx4 v[132:135], v128, {SWS}, s28 offen sc1")
    a(f"s_mov_b32 s28, {WS_MODT + 4*640*8}")
    a(f"buffer_load_dwordx4 v[136:139], v128, {SWS}, s28 offen sc1")
    a(f"s_branch {l2}")
    a.label(l1)
    a(f"s_cmp_eq_u32 s{S_WAVE}, 7"); a(f"s_cbranch_scc1 {l2}")
    a(f"s_mul_i32 s24, s{S_J}, 640")
    a(f"s_mov_b32 s25, {5*640*8}")
    a(f"s_cmp_eq_u32 s{S_WAVE}, 5")
    a(f"s_cselect_b32 s25, {2*640*8}, s25")
    a(f"s_add_u32 s28, s24, s25")
    a(f"s_add_u32 s28, s28, {WS_MODT}")
    a(f"v_lshlrev_b32 v128, 4, v1")
    a("s_mov_b32 exec_hi, 0xff")
    a(f"buffer_load_dwordx4 v[132:135], v128, {SWS}, s28 offen sc1")
    a("s_mov_b32 exec_hi, -1")
    a.label(l2)

def mod2_zero(a):
    a(f"""
    v_mov_b32 v140, 0
    v_lshlrev_b32 v141, 2, v1
    v_add_u32 v141, {L_SC}, v141
    s_mov_b64 exec, 0xff
    ds_write_b32 v141, v140
    s_mov_b64 exec, -1
    """)

def mod2_use(a):
    lb = a.new_label('L_m2b'); le = a.new_label('L_m2e')
    a(f"s_cmp_ge_u32 s{S_WAVE}, 5"); a(f"s_cbranch_scc1 {lb}")
    check_or_poll(a, [133, 135, 137, 139], lambda: mod2_loads(a))
    a(f"""
    v_add_f32 v136, 1.0, v136
    v_add_f32 v138, 1.0, v138
    v_cvt_pk_bf16_f32 v140, v136, v138
    v_cvt_pk_bf16_f32 v141, v132, v134
    v_lshlrev_b32 v142, 2, v0
    v_add_u32 v142, {L_G16}, v142
    ds_write_b32 v142, v140
    ds_write_b32 v142, v141 offset:1280
    v_lshlrev_b32 v136, 16, v140
    v_and_b32 v137, 0xffff0000, v140
    v_mov_b32 v133, v134
    s_mul_i32 s24, s{S_J}, 40
    v_subrev_u32 v142, s24, v0
    v_cmp_gt_u32 vcc, 40, v142
    v_lshlrev_b32 v142, 3, v142
    v_add_u32 v142, {L_MISC}, v142
    s_and_saveexec_b64 s[30:31], vcc
    ds_write_b64 v142, v[136:137] offset:320
    ds_write_b64 v142, v[132:133] offset:640
    s_mov_b64 exec, s[30:31]
    v_add_f32 v144, v136, v137
    v_mul_f32 v145, v136, v136
    v_fmac_f32 v145, v137, v137
    v_mul_f32 v146, v136, v132
    v_fmac_f32 v146, v137, v133
    v_add_f32 v147, v132, v133
    v_mul_f32 v148, v132, v132
    v_fmac_f32 v148, v133, v133
    """)
    wave_reduce_add_dpp(a, [144, 145, 146, 147, 148])
    a(f"""
    v_mov_b32 v149, {L_SC}
    v_cmp_eq_u32 vcc, 63, v1
    s_and_saveexec_b64 s[30:31], vcc
    ds_add_f32 v149, v144
    ds_add_f32 v149, v145 offset:4
    ds_add_f32 v149, v146 offset:8
    ds_add_f32 v149, v147 offset:12
    ds_add_f32 v149, v148 offset:16
    s_mov_b64 exec, s[30:31]
    s_branch {le}
    """)
    a.label(lb)
    a(f"s_cmp_eq_u32 s{S_WAVE}, 7"); a(f"s_cbranch_scc1 {le}")
    a("s_mov_b32 exec_hi, 0xff")
    check_or_poll(a, [133, 135], lambda: (mod2_loads(a), a("s_mov_b32 exec_hi, 0xff")))
    a(f"""
    v_mov_b32 v133, v134
    s_cmp_eq_u32 s{S_WAVE}, 5
    s_cselect_b32 s24, 0, 960
    s_add_u32 s24, s24, {L_MISC}
    v_lshl_add_u32 v142, v1, 3, s24
    ds_write_b64 v142, v[132:133]
    s_mov_b64 exec, -1
    """)
    a.label(le)

def pflag_loads(a):
    base = WS_FLAGS + FL_P*4096
    a(f"""
    v_mul_u32_u24 v153, 3277, v1
    v_lshrrev_b32 v153, 16, v153
    v_mul_u32_u24 v154, 20, v153
    v_sub_u32 v154, v1, v154
    v_mul_u32_u24 v153, 160, v153
    v_add_u32 v153, v153, v154
    s_mul_i32 s24, s{S_J}, 20
    v_add_u32 v153, s24, v153
    v_lshlrev_b32 v153, 2, v153
    s_mov_b32 s28, {base}
    v_mov_b32 v150, s{FLAGV}
    v_mov_b32 v151, s{FLAGV}
    v_mov_b32 v152, s{FLAGV}
    v_lshlrev_b32 v154, 2, v1
    s_mov_b32 exec_hi, 0x0fffffff
    buffer_load_dword v150, v153, {SWS}, s28 offen sc1
    s_and_b32 s24, s{S_T}, 15
    s_mul_i32 s24, s24, 80
    s_add_u32 s24, s24, {base + 480*4}
    s_mov_b64 exec, 0xfffff
    buffer_load_dword v151, v154, {SWS}, s24 offen sc1
    s_mul_i32 s24, s{S_J}, {54*4}
    s_add_u32 s24, s24, {base + 800*4}
    s_mov_b32 exec_lo, -1
    s_mov_b32 exec_hi, 0x3fffff
    buffer_load_dword v152, v154, {SWS}, s24 offen sc1
    s_mov_b64 exec, -1
    """)

def cv_loads(a):
    lab = a.new_label('L_lcv')
    a(f"s_cmp_lg_u32 s{S_WAVE}, 4"); a(f"s_cbranch_scc1 {lab}")
    a(f"""
    s_mul_i32 s24, s{S_J}, 320
    v_lshlrev_b32 v204, 4, v1
    s_mov_b64 exec, {hex((1 << 20) - 1)}
    s_add_u32 s25, s24, {WS_CV + CV_G}
    buffer_load_dwordx4 v[208:211], v204, {SWS}, s25 offen sc1
    s_add_u32 s25, s24, {WS_CV + CV_B}
    buffer_load_dwordx4 v[212:215], v204, {SWS}, s25 offen sc1
    s_add_u32 s25, s24, {WS_CV + CV_C}
    buffer_load_dwordx4 v[216:219], v204, {SWS}, s25 offen sc1
    s_and_b32 s24, s{S_T}, 15
    s_mul_i32 s25, s24, 448
    s_sub_u32 s26, s24, 12
    s_mul_i32 s26, s26, 384
    s_add_u32 s26, s26, {1344*4}
    s_cmp_lt_u32 s24, 12
    s_cselect_b32 s25, s25, s26
    s_add_u32 s25, s25, {WS_CV + CV_S3}
    s_mov_b64 exec, {hex((1 << 28) - 1)}
    buffer_load_dwordx4 v[220:223], v204, {SWS}, s25 offen sc1
    s_mov_b64 exec, -1
    """)
    a.label(lab)
def cv_store(a):
    lab = a.new_label('L_scv')
    a(f"s_cmp_lg_u32 s{S_WAVE}, 4"); a(f"s_cbranch_scc1 {lab}")
    a(f"""
    v_add_u32 v204, {CHN.L_CV}, v204
    s_mov_b64 exec, {hex((1 << 20) - 1)}
    ds_write_b128 v204, v[208:211]
    ds_write_b128 v204, v[212:215] offset:320
    ds_write_b128 v204, v[216:219] offset:640
    s_mov_b64 exec, {hex((1 << 28) - 1)}
    ds_write_b128 v204, v[220:223] offset:960
    s_mov_b64 exec, -1
    """)
    a.label(lab)

def census_load(a):
    a(f"""
    s_lshl_b32 s28, s{S_X}, 7
    s_add_u32 s28, s28, {WS_XC}
    v_lshlrev_b32 v128, 2, v1
    s_mov_b64 exec, 0xffffffff
    buffer_load_dword v129, v128, {SWS}, s28 offen sc1
    s_mov_b64 exec, -1
    """)
def census_use(a):
    a(f"""
    s_and_b32 s24, s{FLAGV}, 0xfffffff0
    s_or_b32 s24, s24, s4
    s_mov_b64 exec, 0xffffffff
    v_cmp_ne_u32 vcc, s24, v129
    s_mov_b64 exec, -1
    s_cmp_eq_u64 vcc, 0
    s_cselect_b32 s{LOCAL}, 1, 0
    """)
    if os.environ.get('FORCE_NONLOCAL'): a(f"s_mov_b32 s{LOCAL}, 0")

def xtile_load(a):
    srd(a, SRD_B, P_X)
    a(f"""
    s_lshl_b32 s24, s{M_}, 4
    v_add_u32 v0, s24, v2
    v_mul_u32_u24 v0, 1280, v0
    v_lshl_add_u32 v0, v3, 3, v0
    s_mul_i32 s24, s{S_J}, 160
    """)
    for t in range(5):
        a(f"buffer_load_dwordx2 v[{208+2*t}:{208+2*t+1}], v0, s[{SRD_B}:{SRD_B+3}], s24 offen offset:{32*t}")

def load_cv(a):
    lab = a.new_label('L_lcv')
    a(f"s_cmp_lg_u32 s{S_WAVE}, 4"); a(f"s_cbranch_scc1 {lab}")
    a(f"""
    s_mul_i32 s24, s{S_J}, 320
    v_lshlrev_b32 v204, 4, v1
    s_mov_b64 exec, {hex((1 << 20) - 1)}
    s_add_u32 s25, s24, {WS_CV + CV_G}
    buffer_load_dwordx4 v[208:211], v204, {SWS}, s25 offen sc1
    s_add_u32 s25, s24, {WS_CV + CV_B}
    buffer_load_dwordx4 v[212:215], v204, {SWS}, s25 offen sc1
    s_add_u32 s25, s24, {WS_CV + CV_C}
    buffer_load_dwordx4 v[216:219], v204, {SWS}, s25 offen sc1
    s_waitcnt vmcnt(0)
    v_add_u32 v204, {CHN.L_CV}, v204
    ds_write_b128 v204, v[208:211]
    ds_write_b128 v204, v[212:215] offset:320
    ds_write_b128 v204, v[216:219] offset:640
    s_waitcnt lgkmcnt(0)
    s_mov_b64 exec, -1
    """)
    a.label(lab)
def load_s3(a):
    lab = a.new_label('L_ls3')
    a(f"s_cmp_lg_u32 s{S_WAVE}, 4"); a(f"s_cbranch_scc1 {lab}")
    a(f"""
    s_and_b32 s24, s{S_T}, 15
    s_mul_i32 s25, s24, 448
    s_sub_u32 s26, s24, 12
    s_mul_i32 s26, s26, 384
    s_add_u32 s26, s26, {1344*4}
    s_cmp_lt_u32 s24, 12
    s_cselect_b32 s25, s25, s26
    s_add_u32 s25, s25, {WS_CV + CV_S3}
    v_lshlrev_b32 v204, 4, v1
    s_mov_b64 exec, {hex((1 << 28) - 1)}
    buffer_load_dwordx4 v[208:211], v204, {SWS}, s25 offen sc1
    s_waitcnt vmcnt(0)
    v_add_u32 v204, {CHN.L_S3}, v204
    ds_write_b128 v204, v[208:211]
    s_waitcnt lgkmcnt(0)
    s_mov_b64 exec, -1
    """)
    a.label(lab)

def census(a):
    a(f"""
    s_lshl_b32 s28, s{S_X}, 7
    s_add_u32 s28, s28, {WS_XC}
    s_and_b32 s24, s{FLAGV}, 0xfffffff0
    v_lshlrev_b32 v128, 2, v1
    s_mov_b64 exec, 0xffffffff
    s_mov_b32 s101, 0x40000
    """)
    lp = a.new_label('L_cs'); dn = a.new_label('L_csd')
    a.label(lp)
    a(f"""
    buffer_load_dword v129, v128, {SWS}, s28 offen sc1
    s_waitcnt vmcnt(0)
    v_and_b32 v130, 0xfffffff0, v129
    v_cmp_ne_u32 vcc, s24, v130
    s_sub_u32 s101, s101, 1
    s_cmp_eq_u64 vcc, 0
    s_cbranch_scc1 {dn}
    s_cmp_lg_u32 s101, 0
    s_cbranch_scc1 {lp}
    """)
    a.label(dn)
    a(f"""
    s_or_b32 s24, s24, s4
    v_cmp_ne_u32 vcc, s24, v129
    s_cmp_eq_u64 vcc, 0
    s_cselect_b32 s{LOCAL}, 1, 0
    s_mov_b64 exec, -1
    """)
    import os
    if os.environ.get('FORCE_NONLOCAL'): a(f"s_mov_b32 s{LOCAL}, 0")

HOOKS = {0: 'a', 1: 'b', 6: 'p', 7: 'q', 8: 'r', 9: 'j', 10: 'e', 11: 'f', 12: 'g', 13: 'h', 14: 'i'}
def attn_hook(a, buf):
    S_CH = AT.S_CH
    def dyn_stamp(reg):
        if not common.STAMP or not os.environ.get('DYN'): return
        a("s_memrealtime s[98:99]"); a("s_waitcnt lgkmcnt(0)")
        a("v_mov_b32 v251, s98"); a(f"v_cmp_eq_u32 vcc, s{S_CH}, v1"); a("s_nop 1"); a(f"v_cndmask_b32 v{reg}, v{reg}, v251, vcc")
    dyn_stamp(252)
    a(f"s_bitcmp1_b32 s81, s{S_CH}")
    a(f"s_cbranch_scc0 L_hk_ret{buf}")
    a(f"s_mov_b32 s39, {buf}")
    a("s_branch L_hk_entry")
    a.label(f"L_hk_ret{buf}")
    dyn_stamp(253)

def hook_ret(a):
    a("s_branch L_hk_exit")

def wait_lt5(a):
    lab = a.new_label('L_w5')
    a(f"s_cmp_lt_u32 s{S_WAVE}, 5"); a(f"s_cbranch_scc0 {lab}")
    a("s_waitcnt vmcnt(0)")
    a.label(lab)

def attn_hook_bodies(a):
    S_CH = AT.S_CH
    def wo_part(n):
        C2.dma_run(a, n, 88, 89, C2.LVA)
    a.label("L_hk_entry")
    a(f"s_sub_u32 s24, s{S_CH}, s{S_WAVE}")
    a("s_cmp_eq_u32 s24, 0"); a("s_cbranch_scc1 L_hp_dma")
    a("s_cmp_eq_u32 s24, 3"); a("s_cbranch_scc1 L_hp_fin")
    a("s_cmp_eq_u32 s24, 5"); a("s_cbranch_scc1 L_hp_flg")
    a.label("L_hp_ret")
    for b, nm in HOOKS.items():
        a(f"s_cmp_eq_u32 s{S_CH}, {b}"); a(f"s_cbranch_scc1 L_hk_{nm}")
    a.label("L_hk_exit")
    a("s_cmp_eq_u32 s39, 0"); a("s_cbranch_scc1 L_hk_ret0")
    a("s_cmp_eq_u32 s39, 1"); a("s_cbranch_scc1 L_hk_ret1")
    a("s_branch L_hk_ret2")
    a.label("L_hp_dma"); prep_dma(a); a("s_branch L_hp_ret")
    a.label("L_hp_fin"); wait_lt5(a); prep_finish(a); a("s_branch L_hp_ret")
    a.label("L_hp_flg"); wait_lt5(a); prep_flag(a); a("s_branch L_hp_ret")
    X = "s_branch L_hk_exit"
    a.label("L_hk_a"); mod2_loads(a); mod2_zero(a); a(X)
    a.label("L_hk_b")
    lb = a.new_label('L_hb'); lb2 = a.new_label('L_hb')
    a(f"s_cmp_lt_u32 s{S_WAVE}, 5"); a(f"s_cbranch_scc1 {lb}")
    a("s_waitcnt vmcnt(5)"); a(f"s_branch {lb2}")
    a.label(lb); a("s_waitcnt vmcnt(0)")
    a.label(lb2)
    mod2_use(a); a(X)
    def prewrite(ws_off, plane0_sreg, nplanes, mreg, rts):
        for q in range((nplanes + 3) // 4):
            n = min(4, nplanes - 4*q)
            for rt in range(rts):
                a(f"s_add_u32 s25, s{plane0_sreg}, {4*q}")
                a(f"s_mul_i32 s25, s25, {PLANE}")
                a(f"s_lshl_b32 s26, s{mreg}, 8")
                a("s_add_u32 s25, s25, s26")
                a(f"s_add_u32 s25, s25, {ws_off + GUARD*16 + 256*rt}")
                if n < 4: a(f"s_mov_b64 exec, {hex((1 << (16*n)) - 1)}")
                a(f"buffer_store_dwordx4 v[204:207], v203, {SWS}, s25 offen sc1")
                if n < 4: a("s_mov_b64 exec, -1")
    def pw_setup():
        a(f"v_mul_u32_u24 v203, {PLANE}, v3"); a("v_lshl_add_u32 v203, v2, 4, v203")
        for r in range(4): a(f"v_mov_b32 v{204+r}, 0")
    for nm, buf in (('p', 0), ('q', 1), ('r', 0)):
        a.label(f"L_hk_{nm}")
        a(f"s_cmp_eq_u32 s{KH}, 0"); a("s_cbranch_scc0 L_hk_exit")
        if (C2.PREW and nm == 'p') or C2.PREWU:
            pw_setup()
            if nm == 'p':
                a(f"s_mul_i32 s27, s{S_J}, 10"); prewrite(WS_O, 27, 10, M_, 1)
                a(f"s_lshr_b32 s27, s{S_J}, 1"); a("s_mul_i32 s27, s27, 20"); a(f"s_and_b32 s28, s{S_J}, 1"); a("s_lshl_b32 s28, s28, 3"); a("s_add_u32 s27, s27, s28")
                prewrite(WS_Z, 27, 8, M_, 1)
            else:
                a(f"""
                s_lshl_b32 s92, s{S_X}, 4
                s_lshr_b32 s24, s{S_T}, 4
                s_lshl_b32 s24, s24, 3
                s_add_u32 s92, s92, s24
                s_lshl_b32 s24, s{W_}, 1
                s_add_u32 s92, s92, s24
                s_and_b32 s27, s{S_T}, 15
                s_mul_i32 s27, s27, 12
                """)
                if nm == 'r': a("s_add_u32 s27, s27, 8")
                prewrite(WS_U, 27, 8 if nm == 'q' else 4, 92, 2)
        a(X)
    a.label("L_hk_j")
    a(f"s_cmp_eq_u32 s{KH}, 0"); a("s_cbranch_scc0 L_hk_exit")
    census_load(a); xtile_load(a); a(X)
    a.label("L_hk_e")
    a(f"s_cmp_gt_u32 s{S_WAVE}, 4"); a("s_cbranch_scc1 L_hk_exit")
    pflag_loads(a); a(X)
    a.label("L_hk_f")
    a(f"s_cmp_gt_u32 s{S_WAVE}, 4"); a("s_cbranch_scc1 L_hk_exit")
    a("s_waitcnt vmcnt(0)")
    check_or_poll(a, [150, 151, 152], lambda: pflag_loads(a))
    a(f"s_cmp_eq_u32 s{KH}, 0"); a("s_cbranch_scc1 L_hk_f0")
    cv_loads(a); a(X)
    a.label("L_hk_f0")
    census_use(a)
    a(f"v_lshlrev_b32 v{C2.LVA}, 4, v1")
    a(f"s_mul_i32 s88, s{S_J}, 102400"); a(f"s_add_u32 s88, s88, {WS_WO}")
    a(f"s_mul_i32 s89, s{W_}, 25600"); a("s_add_u32 s88, s88, s89")
    wo_part(7); a(X)
    a.label("L_hk_g")
    a(f"s_cmp_eq_u32 s{KH}, 0"); a("s_cbranch_scc1 L_hk_g0")
    a(f"s_cmp_lg_u32 s{S_WAVE}, 4"); a("s_cbranch_scc1 L_hk_exit")
    a("s_waitcnt vmcnt(0)"); cv_store(a); a(X)
    a.label("L_hk_g0"); wo_part(6); a(X)
    for nm in ('h', 'i'):
        a.label(f"L_hk_{nm}")
        a(f"s_cmp_eq_u32 s{KH}, 0"); a("s_cbranch_scc0 L_hk_exit")
        wo_part(6); a(X)

_issue_emitted = [False]
def loader_issue_call(a):
    a("s_mov_b32 s95, 0")
    a("s_branch L_ld_issue")
    a.label("L_ld_ret0")

def gen_fused(a, name):
    header(a, name)
    END = 'L_end'
    if common.STAMP: a("v_mov_b32 v255, 0")
    stamp(a, 0)
    prologue(a, end_label=END)
    lane_ids(a)
    if os.environ.get('CODEPF', '1') == '1':
        lab = a.new_label('L_cpf')
        a(f"s_cmp_lg_u32 s{S_WAVE}, 6"); a(f"s_cbranch_scc1 {lab}")
        a("s_getpc_b64 s[24:25]")
        a.label("L_cpf_pc")
        a("s_mov_b32 s26, L_end-L_cpf_pc")
        a("v_lshlrev_b32 v10, 7, v1")
        a("v_mov_b32 v9, s25")
        a("v_add_co_u32 v8, vcc, s24, v10")
        a("s_nop 1")
        a("v_addc_co_u32 v9, vcc, 0, v9, vcc")
        for q in range(6):
            a("v_cmp_gt_u32 vcc, s26, v10")
            a("s_and_saveexec_b64 s[30:31], vcc")
            lq = a.new_label('L_cpq')
            a(f"s_cbranch_execz {lq}")
            a(f"global_load_dword v{230+q}, v[8:9], off")
            a.label(lq)
            a("s_mov_b64 exec, s[30:31]")
            a("v_add_u32 v10, 0x2000, v10")
            a("v_add_co_u32 v8, vcc, 0x2000, v8")
            a("s_nop 1")
            a("v_addc_co_u32 v9, vcc, 0, v9, vcc")
        a.label(lab)
    F2.front(a, poll_generic)
    SC_ = SWS
    V_DMA, V_AK, V_AT = AT.V_DMA, AT.V_AK, AT.V_AT
    a(f"""
    v_lshlrev_b32 v{V_DMA}, 4, v1
    v_lshlrev_b32 v7, 3, v1
    s_mul_i32 s24, s{KH}, {2*KVT}
    s_add_u32 s24, s24, {KVB}
    v_add_u32 v{V_AK}, s24, v{V_DMA}
    s_add_u32 s24, s24, {KV_KT}
    v_add_u32 v{V_AT}, s24, v7
    s_sub_u32 s84, s{S_WAVE}, 5
    s_lshl_b32 s84, s84, 10
    s_add_u32 s85, s84, 12288
    s_min_u32 s85, s85, {13*1024}
    """)
    stamp(a, 11)
    stamp(a, 12)
    prep_decode(a)
    a(f"s_cmp_lg_u32 s{S_WAVE}, 7"); a("s_cbranch_scc1 L_kvw")
    a(f"s_mov_b32 s28, {WS_KVF}")
    a("v_lshlrev_b32 v22, 8, v1")
    lp = a.new_label('L_kvp'); dn = a.new_label('L_kvpd')
    a("s_mov_b32 s101, 0x40000")
    a.label(lp)
    a(f"buffer_load_dword v20, v22, {SWS}, s28 offen sc1")
    a(f"buffer_load_dword v21, v22, {SWS}, s28 offen offset:128 sc1")
    a("s_waitcnt vmcnt(0)")
    a(f"v_cmp_ne_u32 vcc, s{FLAGV}, v20")
    a(f"v_cmp_ne_u32 s[26:27], s{FLAGV}, v21")
    a("s_or_b64 vcc, vcc, s[26:27]")
    a("s_sub_u32 s101, s101, 1")
    a("s_cmp_eq_u64 vcc, 0")
    a(f"s_cbranch_scc1 {dn}")
    a(f"s_sleep {SLEEP}")
    a("s_cmp_lg_u32 s101, 0")
    a(f"s_cbranch_scc1 {lp}")
    a.label(dn)
    a.label("L_kvw")
    a("s_barrier")
    stamp(a, 13)
    a(f"s_cmp_lt_u32 s{S_WAVE}, 5"); a("s_cbranch_scc1 L_kv0")
    a(f"s_add_u32 s82, s84, {WS_KV}")
    AT.kv_dma5(a, 0, KVB); AT.kv_dma5(a, 1, KVB); AT.kv_dma5(a, 2, KVB)
    a.label("L_kv0")
    QAM, QBM, QAT, QBT = AT.QAM, AT.QBM, AT.QAT, AT.QBT
    a(f"""
    v_lshlrev_b32 v20, 3, v1
    s_mov_b32 s27, {WS_KN}
    buffer_load_dwordx2 v[22:23], v20, {SWS}, s27 offen sc1
    v_mov_b32 v25, 0
    v_mov_b32 v26, 0
    v_mov_b32 v27, 0
    """)
    for r in range(4):
        a(f"v_dot2c_f32_bf16 v25, v{QAM+r}, v{QAM+r}")
        a(f"v_dot2c_f32_bf16 v26, v{QBM+r}, v{QBM+r}")
    for r in range(4): a(f"v_dot2c_f32_bf16 v27, v{QAT+r}, v{QAT+r}")
    a("s_waitcnt vmcnt(0)")
    a("v_max_f32 v21, v22, v23")
    a("v_max3_f32 v25, v25, v26, v27")
    steps = ["row_shr:1 row_mask:0xf bank_mask:0xf", "row_shr:2 row_mask:0xf bank_mask:0xf", "row_shr:4 row_mask:0xf bank_mask:0xf",
             "row_shr:8 row_mask:0xf bank_mask:0xf", "row_bcast:15 row_mask:0xa bank_mask:0xf", "row_bcast:31 row_mask:0xc bank_mask:0xf"]
    a("s_nop 0")
    for st in steps:
        a(f"v_max_f32_dpp v21, v21, v21 {st}"); a(f"v_max_f32_dpp v25, v25, v25 {st}"); a("s_nop 0")
    a(f"""
    v_mul_f32 v21, v21, v25
    v_mul_f32 v21, 0x40400000, v21
    s_nop 0
    v_readlane_b32 s28, v21, 63
    s_nop 1
    v_mov_b32 v22, s28
    v_mov_b32 v23, {hex(f32bits(9000.0))}
    v_cmp_nle_f32 vcc, v22, v23
    s_cmp_lg_u64 vcc, 0
    s_cselect_b32 s28, 1, 0
    v_mov_b32 v22, s28
    s_lshl_b32 s29, s{S_WAVE}, 2
    s_add_u32 s29, s29, {L_UNS}
    v_mov_b32 v23, s29
    ds_write_b32 v23, v22
    s_waitcnt lgkmcnt(0)
    s_barrier
    v_and_b32 v23, 7, v1
    v_lshlrev_b32 v23, 2, v23
    ds_read_b32 v22, v23 offset:{L_UNS - 0}
    s_waitcnt lgkmcnt(0)
    v_cmp_ne_u32 vcc, 0, v22
    s_cmp_lg_u64 vcc, 0
    s_cbranch_scc0 L_at_fast
    """.replace(f"offset:{L_UNS}", "offset:0").replace("v_lshlrev_b32 v23, 2, v23\n", f"v_lshlrev_b32 v23, 2, v23\n    v_add_u32 v23, {L_UNS}, v23\n"))
    AT.gen_maxpass(a, KVB, KH, fused=True)
    a(f"s_cmp_lt_u32 s{S_WAVE}, 5"); a("s_cbranch_scc1 L_kv1")
    a(f"s_add_u32 s82, s84, {WS_KV}")
    AT.kv_dma5(a, 0, KVB); AT.kv_dma5(a, 1, KVB); AT.kv_dma5(a, 2, KVB)
    a.label("L_kv1")
    a("s_waitcnt vmcnt(0)")
    a("s_barrier")
    a.label("L_at_fast")
    pw = ((1 << 6) if C2.PREW else 0) | (((1 << 7) | (1 << 8)) if C2.PREWU else 0)
    base03 = 0b11 | pw | (1 << 9) | (1 << 10) | (1 << 11) | (1 << 12) | (1 << 13) | (1 << 14)
    a(f"s_lshl_b32 s24, {0b101001}, s{S_WAVE}")
    a(f"s_or_b32 s81, s24, {base03}")
    a(f"s_or_b32 s25, s24, {0b11 | (1 << 10) | (1 << 11) | (1 << 12)}")
    a(f"s_cmp_eq_u32 s{S_WAVE}, 4"); a("s_cselect_b32 s81, s25, s81")
    a(f"s_cmp_gt_u32 s{S_WAVE}, 4"); a("s_cselect_b32 s81, 3, s81")
    stamp(a, 14)
    AT.gen_attn_core3(a, KVB, attn_hook)
    stamp(a, 15)
    if common.STAMP:
        a(f"""
        s_lshl_b32 s24, s2, 3
        s_add_u32 s24, s24, s{S_WAVE}
        s_lshl_b32 s24, s24, 7
        s_add_u32 s24, s24, {WS_DBG1 + 0xA0000}
        v_lshlrev_b32 v251, 2, v1
        s_mov_b64 exec, 0xffff
        buffer_store_dword v252, v251, {SWS}, s24 offen
        buffer_store_dword v253, v251, {SWS}, s24 offen offset:64
        s_mov_b64 exec, -1
        """)
    CHN.LOCAL = LOCAL
    attn_epilogue(a)
    a(f"s_cmp_ge_u32 s{S_WAVE}, 4")
    a("s_cbranch_scc1 L_ch_loader")
    common.STAMP_OFF = 16
    C2.gen_compute(a)
    a(f"s_branch {END}")
    attn_hook_bodies(a)
    a.label("L_ch_loader")
    C2.gen_loader(a)
    stamp_dump(a)
    a.label(END)
    a("s_endpgm")

def attn_epilogue(a):
    OA, OB, SA = AT.OA, AT.OB, AT.SA
    a("s_barrier")
    a(f"""
    s_mul_i32 s24, s{W_}, 6144
    s_add_u32 s24, s24, {KVB}
    v_lshl_add_u32 v7, v1, 4, s24
    s_cmp_eq_u32 s{KH}, 0
    s_cbranch_scc1 L_ae_rd
    s_nop 7
    """)
    for q in range(3):
        a(f"ds_write_b128 v7, v[{OA+4*q}:{OA+4*q+3}] offset:{1024*q}")
        a(f"ds_write_b128 v7, v[{OB+4*q}:{OB+4*q+3}] offset:{1024*(3+q)}")
    a("s_waitcnt lgkmcnt(0)")
    a.label("L_ae_rd")
    a("s_barrier")
    a(f"s_cmp_eq_u32 s{KH}, 0")
    a("s_cbranch_scc0 L_ae_done")
    for q in range(6): a(f"ds_read_b128 v[{SA+4*q}:{SA+4*q+3}], v7 offset:{1024*q}")
    a("s_waitcnt lgkmcnt(0)")
    for r in range(12):
        a(f"v_add_f32 v{OA+r}, v{OA+r}, v{SA+r}")
        a(f"v_add_f32 v{OB+r}, v{OB+r}, v{SA+12+r}")
    a(f"v_mov_b32 v20, v{OA+8}"); a(f"v_mov_b32 v21, v{OA+8}"); a(f"v_mov_b32 v22, v{OB+8}"); a(f"v_mov_b32 v23, v{OB+8}")
    a("s_nop 1")
    a("v_permlane32_swap_b32 v20, v21"); a("v_permlane32_swap_b32 v22, v23")
    a("v_rcp_f32 v21, v21"); a("v_rcp_f32 v23, v23"); a("s_nop 0")
    for r in range(12):
        a(f"v_mul_f32 v{OA+r}, v{OA+r}, v21"); a(f"v_mul_f32 v{OB+r}, v{OB+r}, v23")
    for k in range(4):
        a(f"v_cvt_pk_bf16_f32 v{24+k}, v{OA+2*k}, v{OA+2*k+1}")
        a(f"v_cvt_pk_bf16_f32 v{28+k}, v{OB+2*k}, v{OB+2*k+1}")
    a(f"v_cvt_pk_bf16_f32 v32, v{OA+8}, v{OA+9}"); a(f"v_cvt_pk_bf16_f32 v33, v{OA+10}, v{OA+11}")
    a(f"v_cvt_pk_bf16_f32 v34, v{OB+8}, v{OB+9}"); a(f"v_cvt_pk_bf16_f32 v35, v{OB+10}, v{OB+11}")
    a(f"""
    v_lshrrev_b32 v36, 5, v1
    v_bfe_u32 v37, v1, 4, 1
    v_lshl_add_u32 v38, v37, 1, v36
    v_mul_u32_u24 v38, {PLANE}, v38
    v_lshl_add_u32 v38, v2, 4, v38
    v_mul_u32_u24 v39, {PLANE}, v37
    v_lshl_add_u32 v39, v2, 4, v39
    v_mov_b32 v40, 0x7fffffff
    v_cmp_eq_u32 vcc, 0, v36
    s_mul_i32 s24, s{S_J}, {10*PLANE}
    s_lshl_b32 s25, s{M_}, 8
    s_add_u32 s24, s24, s25
    v_cndmask_b32 v39, v40, v39, vcc
    s_add_u32 s24, s24, {WS_O + GUARD*16}
    s_add_u32 s25, s24, {4*PLANE}
    s_add_u32 s26, s24, {8*PLANE}
    """)
    def emit(m):
        a(f"buffer_store_dwordx4 v[24:27], v38, {SWS}, s24 offen {m}")
        a(f"buffer_store_dwordx4 v[28:31], v38, {SWS}, s25 offen {m}")
        a(f"buffer_store_dwordx4 v[32:35], v39, {SWS}, s26 offen {m}")
    CHN.st_variants(a, emit, force_sc1=not C2.PREW)
    CHN.flag_off(a, 25, CHN.FL_O, M_, S_J)
    CHN.signal(a, 25)
    a.label("L_ae_done")
```
